```python
import torch

def _softmax(x, axis=-1):
    return torch.softmax(x, dim=axis)
def _gelu(x):
    return torch.nn.functional.gelu(x, approximate="tanh")
def _silu(x):
    return torch.nn.functional.silu(x)
def _sigmoid(x):
    return torch.sigmoid(x)
def _layernorm(x, axis=-1, eps=1e-5):
    m = x.mean(dim=axis, keepdim=True)
    v = x.var(dim=axis, keepdim=True, unbiased=False)
    return (x - m) / torch.sqrt(v + eps)
def _scatter_add(tgt, idx, src, axis=0):
    return tgt.clone().index_add_(axis, idx, src)
def _segment_sum(src, seg, n):
    out = torch.zeros((n,) + src.shape[1:], dtype=src.dtype)
    return out.index_add_(0, seg, src)
def _pad(x, pw):
    flat = tuple(v for pair in reversed(pw) for v in pair)
    return torch.nn.functional.pad(x, flat)

kernel_name = 'parallel_sum__compressed_kv_cla__glu_gated_bilinear__decode'

def setup_inputs():

    _w = (lambda a: (lambda t: t.to(torch.bfloat16) if t.is_floating_point() else t)(torch.as_tensor(a)))
    def _A_setup():
        B, H, Sq, Sk, D, M = 2, 32, 1, 8192, 128, 512
        Dc = 4 * D
        return {
            "x": _w((lambda *s: torch.randn(*s, dtype=torch.bfloat16) * 0.05)(B, Sq, M)),
            "c_kv": _w((lambda *s: torch.randn(*s, dtype=torch.bfloat16) * 0.8)(B, Sk, Dc)),
            "w_q": _w((lambda *s: torch.randn(*s, dtype=torch.bfloat16) * 1.6)(M, H, D) * (M ** -0.5)),
            "w_uk": _w((lambda *s: torch.randn(*s, dtype=torch.bfloat16) * 1.6)(Dc, H, D) * (Dc ** -0.5)),
            "w_uv": _w((lambda *s: torch.randn(*s, dtype=torch.bfloat16) * 0.8)(Dc, H, D) * (Dc ** -0.5)),
            "w_o": _w((lambda *s: torch.randn(*s, dtype=torch.bfloat16) * 0.8)(H, D, M) * ((H * D) ** -0.5)),
        }
    _A_in = _A_setup()

    def _B_setup():
        B, S, D, F = 2, 1, 512, 1792
        return {
            "x": _w((lambda *s: torch.randn(*s, dtype=torch.bfloat16) * 0.05)(B, S, D)),
            "w_gate": _w((lambda *s: torch.randn(*s, dtype=torch.bfloat16) * 0.4)(D, F) * (D ** -0.5)),
            "w_up": _w((lambda *s: torch.randn(*s, dtype=torch.bfloat16) * 0.4)(D, F) * (D ** -0.5)),
            "w_down": _w((lambda *s: torch.randn(*s, dtype=torch.bfloat16) * 0.4)(F, D) * (F ** -0.5)),
        }
    _B_in = _B_setup()

    return {
        "A_x": _A_in["x"],
        "A_c_kv": _A_in["c_kv"],
        "A_w_q": _A_in["w_q"],
        "A_w_uk": _A_in["w_uk"],
        "A_w_uv": _A_in["w_uv"],
        "A_w_o": _A_in["w_o"],
        "B_x": _B_in["x"],
        "B_w_gate": _B_in["w_gate"],
        "B_w_up": _B_in["w_up"],
        "B_w_down": _B_in["w_down"],
    }

def reference(A_x, A_c_kv, A_w_q, A_w_uk, A_w_uv, A_w_o, B_x, B_w_gate, B_w_up, B_w_down):
    def _A_ref(x, c_kv, w_q, w_uk, w_uv, w_o):
        B, Sq, M = x.shape[0], x.shape[1], x.shape[2]
        Sk = c_kv.shape[1]
        H, D = w_q.shape[1], w_q.shape[2]
        q = torch.einsum("bqm,mhd->bhqd", x, w_q)
        k = torch.einsum("bkc,chd->bhkd", c_kv, w_uk)
        v = torch.einsum("bkc,chd->bhkd", c_kv, w_uv)
        scores = torch.einsum("bhqd,bhkd->bhqk", q, k) * (D ** -0.5)
        off = Sk - Sq
        qi = torch.arange(Sq)[:, None]
        kj = torch.arange(Sk)[None, :]
        cmask = kj <= (qi + off)
        scores = torch.where(cmask[None, None], scores, -1e9)
        p = _softmax(scores, axis=-1)
        ctx = torch.einsum("bhqk,bhkd->bhqd", p, v)
        return torch.einsum("bhqd,hdm->bqm", ctx, w_o)

    def _B_ref(x, w_gate, w_up, w_down):
        g = torch.einsum("bsd,df->bsf", x, w_gate)
        u = torch.einsum("bsd,df->bsf", x, w_up)
        h = g * u
        return torch.einsum("bsf,fd->bsd", h, w_down)

    x = A_x
    xn = _layernorm(x, axis=-1)
    return x + _A_ref(xn, A_c_kv, A_w_q, A_w_uk, A_w_uv, A_w_o) + _B_ref(xn, B_w_gate, B_w_up, B_w_down)
```

```python
NAME = "parallel_sum__compressed_kv_cla__glu_gated_bilinear__decode"
HDR = """; Kernarg layout for this problem (104 bytes, ptrs only, base s[0:1]):
"""
class Asm:
    def __init__(self):
        self.lines = []
        self.launches = []
        self.kds = []
        self._lab = 0
    def __call__(self, s):
        for l in s.strip("\n").split("\n"):
            l = l.rstrip()
            if l.strip() == "": continue
            self.lines.append("    " + l.strip() if not l.strip().endswith(":") else l.strip())
    def label(self, base="L"):
        self._lab += 1
        return f"{base}_{self._lab}"
    def begin_kernel(self, name):
        self.lines.append(".text")
        self.lines.append(f".globl {name}")
        self.lines.append(".p2align 8")
        self.lines.append(f".type {name},@function")
        self.lines.append(f"{name}:")
    def end_kernel(self, name, vgpr, sgpr=102, accum=None):
        if accum is None: accum = min(256, (vgpr + 3) // 4 * 4)
        self.kds.append(f""".section .rodata,"a"
.p2align 6
.amdhsa_kernel {name}
  .amdhsa_next_free_vgpr {vgpr}
  .amdhsa_next_free_sgpr {sgpr}
  .amdhsa_accum_offset {accum}
  .amdhsa_group_segment_fixed_size 0
  .amdhsa_kernarg_size 104
  .amdhsa_user_sgpr_count 2
  .amdhsa_user_sgpr_kernarg_segment_ptr 1
  .amdhsa_system_sgpr_workgroup_id_x 1
  .amdhsa_float_denorm_mode_32 3
.end_amdhsa_kernel""")
    def launch(self, name, grid, block, lds, single=False):
        if single:
            self.launches.append(f"; @launch grid=({grid},1,1) block=({block},1,1) lds={lds}")
        else:
            self.launches.append(f"; @launch kernel={name} grid=({grid},1,1) block=({block},1,1) lds={lds}")
    def text(self, extra_hdr=""):
        return HDR + extra_hdr + "\n".join(self.launches) + "\n" + '.amdgcn_target "amdgcn-amd-amdhsa--gfx950"\n' + "\n".join(self.lines) + "\n" + "\n".join(self.kds) + "\n"
def vr(a, n=1): return f"v{a}" if n == 1 else f"v[{a}:{a+n-1}]"
def ar(a, n=1): return f"a{a}" if n == 1 else f"a[{a}:{a+n-1}]"
def sr(a, n=1): return f"s{a}" if n == 1 else f"s[{a}:{a+n-1}]"
```

```python
import re
TRANS = ("v_exp_f32", "v_log_f32", "v_rcp_f32", "v_rsq_f32", "v_sqrt_f32", "v_sin_f32", "v_cos_f32")
def regs_of(tok):
    tok = tok.strip()
    tok = tok.lstrip("-")
    m = re.fullmatch(r"abs\((.*)\)", tok)
    if m: tok = m.group(1)
    tok = tok.strip("|")
    m = re.fullmatch(r"([vas])(\d+)", tok)
    if m: return [(m.group(1), int(m.group(2)))]
    m = re.fullmatch(r"([vas])\[(\d+):(\d+)\]", tok)
    if m: return [(m.group(1), i) for i in range(int(m.group(2)), int(m.group(3)) + 1)]
    if tok == "vcc": return [("s", "vcc")]
    if tok == "exec": return [("s", "exec")]
    if tok == "m0": return [("s", "m0")]
    return []
class I:
    def __init__(s, line):
        s.line = line
        t = line.split(";")[0].strip()
        s.is_label = t.endswith(":")
        s.is_dir = t.startswith(".")
        s.op = t.split()[0] if t else ""
        rest = t[len(s.op):].strip()
        ops = [o.strip() for o in rest.split(",")] if rest else []
        mods = ""
        if ops:
            parts = ops[-1].split()
        m = re.search(r"\s(quad_perm|row_shr|row_shl|row_ror|row_bcast|row_mirror|row_half_mirror|wave_shr|wave_shl|row_newbcast)", " " + rest)
        s.dpp = bool(m) or s.op.endswith("_dpp")
        rest2 = re.sub(r"\b(quad_perm|op_sel|op_sel_hi|neg_lo|neg_hi):\[[^\]]*\]", "", rest)
        ops = [o.strip() for o in rest2.split(",")] if rest2 else []
        ops = [o.split()[0] if o.split() else "" for o in ops]
        s.ops = ops
        s.lds = bool(re.search(r"\blds\b", rest2)) or s.op.startswith("global_load_lds")
        op = s.op
        s.mfma = op.startswith("v_mfma")
        s.valu = op.startswith("v_") and not s.mfma
        s.salu = op.startswith("s_")
        s.ds = op.startswith("ds_")
        s.vmem = op.startswith("buffer_") or op.startswith("global_")
        s.trans = any(op.startswith(x) for x in TRANS)
        s.w = []; s.r = []; s.C = []; s.store_data = []
        R = [regs_of(o) for o in ops]
        if s.mfma:
            s.w = R[0]; s.AB = R[1] + R[2]; s.C = R[3]; s.r = s.AB + s.C
            s.passes = 8 if "32x32x16" in op or "32x32x8" in op else 4
        elif s.valu:
            if op.startswith("v_cmp"):
                s.w = R[0]; s.r = sum(R[1:], [])
            elif op.startswith("v_permlane") and "swap" in op:
                s.w = R[0] + R[1]; s.r = R[0] + R[1]
            elif op.startswith("v_add_co") or op.startswith("v_addc_co") or op.startswith("v_sub_co"):
                s.w = R[0] + R[1]; s.r = sum(R[2:], [])
            elif op == "v_nop":
                pass
            else:
                s.w = R[0]; s.r = sum(R[1:], [])
                if op.startswith("v_fmac") or op.startswith("v_dot2c") or s.dpp or op.startswith("v_writelane"): s.r = s.r + R[0]
                if op.startswith("v_cndmask") and len(ops) == 3: s.r = s.r + [("s", "vcc")]
        elif s.ds:
            if op.startswith("ds_read") or op.startswith("ds_bpermute") or op.startswith("ds_swizzle") or op.startswith("ds_permute"):
                s.w = R[0]; s.r = sum(R[1:], [])
            else:
                s.r = sum(R, [])
        elif s.vmem:
            if "load" in op and not s.lds:
                s.w = R[0]; s.r = sum(R[1:], [])
            elif op.startswith("buffer_store"):
                s.r = sum(R, []); s.store_data = R[0] if ("x4" in op or "x3" in op) else []
            elif op.startswith("global_store"):
                s.r = sum(R, []); s.store_data = R[1] if ("x4" in op or "x3" in op) else []
            else:
                s.r = sum(R, [])
            if s.lds: s.r = s.r + [("s", "m0")]
        elif s.salu:
            if op.startswith("s_cmp") or op.startswith("s_waitcnt") or op.startswith("s_cbranch") or op in ("s_barrier", "s_nop", "s_branch", "s_endpgm", "s_sleep", "s_setprio") or op.startswith("s_bitcmp"):
                s.r = sum(R, [])
            else:
                s.w = R[0] if R else []; s.r = sum(R[1:], [])
        s.states = 1
        if op == "s_nop": s.states = int(ops[0], 0) + 1
        if s.is_label or s.is_dir or not op: s.states = 0
def need(p, c):
    n = 0
    pw = set(p.w);
    if p.mfma:
        tab = {4: (8, 6, 3), 8: (12, 10, 7)}[p.passes]
        if c.mfma:
            if pw & set(c.AB): n = max(n, tab[0])
            if pw & set(c.C) and not (p.w == c.C and p.passes == c.passes): n = max(n, tab[1])
            if pw & set(c.w) and not (pw & set(c.C)): n = max(n, tab[1])
        elif c.valu or c.ds or c.vmem:
            if pw & (set(c.r) | set(c.w)): n = max(n, tab[0])
        if c.valu and set(p.C) & set(c.w): n = max(n, tab[2])
    if p.valu:
        pv = {x for x in pw if x[0] in "va"}; ps = {x for x in pw if x[0] == "s"}
        if c.mfma and pv & set(c.r): n = max(n, 2)
        if c.valu and c.dpp and pv & set(c.r): n = max(n, 2)
        if c.valu and c.op.startswith("v_permlane") and pv & set(c.r): n = max(n, 2)
        if c.valu and (c.op.startswith("v_readlane") or c.op.startswith("v_readfirstlane")) and pv & set(c.r): n = max(n, 1)
        if p.trans and (c.valu or c.ds or c.vmem) and pv & set(c.r): n = max(n, 1)
        if ps and c.valu and ps & set(c.r): n = max(n, 4 if c.op.startswith(("v_readlane", "v_writelane")) else 2)
        if ps and c.vmem and ps & set(c.r): n = max(n, 5)
    if p.salu and ("s", "m0") in pw and c.lds: n = max(n, 1)
    if p.store_data and set(p.store_data) & set(c.w): n = max(n, 2)
    return n
def fix(lines, verbose=False):
    out = []; hist = []
    added = 0
    for line in lines:
        c = I(line)
        if c.states == 0:
            out.append(line); continue
        dist = 0; req = 0
        for p in reversed(hist):
            if dist >= 20: break
            k = need(p, c)
            if k > dist: req = max(req, k - dist)
            dist += p.states
        if req > 0:
            while req > 0:
                k = min(req, 16)
                nl = f"    s_nop {k-1}"
                out.append(nl); hist.append(I(nl)); added += k; req -= k
                if verbose: print("hazard pad", k, "before", line.strip())
        out.append(line); hist.append(c)
        if c.op in ("s_branch", "s_endpgm"): hist = []
        if len(hist) > 40: hist = hist[-30:]
    return out, added
```

```python
import sys, math
from asmlib import *
import hazard

WS_GEN = 0
WS_QG  = 4096
WS_ST  = WS_QG + 65536
OGS    = 32768 + 256
WS_OG  = 1 << 20
FPS    = 32768 + 128
WS_FP  = 8 << 20
WS_USED = 16 << 20
STAMP  = 200 * 1024 * 1024
SCALE  = (128 ** -0.5) * math.log2(math.e)
SPIN   = 4000

def f2u(x):
    import struct
    return struct.unpack("<I", struct.pack("<f", x))[0]

class RA:
    def __init__(s, start, end): s.p = start; s.end = end
    def __call__(s, n=1, al=1):
        if n > 1 and al == 1: al = 2
        s.p = (s.p + al - 1) // al * al
        r = s.p; s.p += n
        assert s.p <= s.end, "out of registers"
        return r

def key32(i):
    return ((i & 3) << 2) | (((i >> 2) & 1) << 1) | ((i >> 3) & 1)

def gen(diag=False, glu=True):
    a = Asm(); kn = NAME + "_kernel"
    a.launch(kn, 256, 256, 163840, single=True)
    a.begin_kernel(kn)
    sW, sIDX, sH, sJ, sB = 30, 52, 53, 54, 55
    sGEN, sW32, sSPIN = 56, 57, 62
    sTAU = 58
    WS, R1, R2, R3, R4 = "s[32:35]", "s[36:39]", "s[40:43]", "s[44:47]", "s[48:51]"
    def stamp(i):
        if diag: a(f"s_memrealtime s[{64+2*i}:{65+2*i}]")
    def srd(base, ptr, size):
        a(f"s_mov_b32 s{base}, s{ptr}\n s_mov_b32 s{base+1}, s{ptr+1}\n s_mov_b32 s{base+2}, {size}\n s_mov_b32 s{base+3}, 0x20000")
    def allsum(regs, tmp):
        for sh in (8, 4, 2, 1):
            for r in regs: a(f"v_add_f32_dpp v{r}, v{r}, v{r} row_ror:{sh} row_mask:0xf bank_mask:0xf")
        for sw in ("v_permlane16_swap_b32", "v_permlane32_swap_b32"):
            for r, t in zip(regs, tmp): a(f"v_mov_b32 v{t}, v{r}")
            for r, t in zip(regs, tmp): a(f"{sw} v{r}, v{t}")
            for r, t in zip(regs, tmp): a(f"v_add_f32 v{r}, v{r}, v{t}")
    def allmax(r, t):
        for sh in (8, 4, 2, 1):
            a(f"v_max_f32_dpp v{r}, v{r}, v{r} row_ror:{sh} row_mask:0xf bank_mask:0xf")
        for sw in ("v_permlane16_swap_b32", "v_permlane32_swap_b32"):
            a(f"v_mov_b32 v{t}, v{r}\n {sw} v{r}, v{t}\n v_max_f32 v{r}, v{r}, v{t}")
    def lsb_tags(dst, pos, t0, t1):
        a(f"""
        v_mul_u32_u24 v{t0}, 37, v{pos}
        v_add_u32 v{t0}, s{sGEN}, v{t0}
        v_and_b32 v{t1}, 3, v{t0}
        v_lshlrev_b32 v{t1}, v{t1}, 1
        v_bfe_i32 v{dst}, v{t0}, 2, 1
        v_and_b32 v{dst}, 15, v{dst}
        v_xor_b32 v{t1}, v{t1}, v{dst}
        v_bfe_u32 v{t0}, v{t0}, 3, 4
        v_lshl_or_b32 v{t0}, v{t0}, 16, v{t1}
        s_mov_b32 s31, 0x10001
        """)
        for i in range(4):
            a(f"v_lshrrev_b32 v{dst+i}, {i}, v{t0}\n v_and_b32 v{dst+i}, s31, v{dst+i}")
    def layernorm(x, f, t, outp):
        for b in range(2):
            for k in range(4):
                a(f"v_lshlrev_b32 v{f+8*b+2*k}, 16, v{x+4*b+k}\n v_and_b32 v{f+8*b+2*k+1}, 0xffff0000, v{x+4*b+k}")
        for b in range(2):
            a(f"v_add_f32 v{t+b}, v{f+8*b}, v{f+8*b+1}")
        for k in range(2, 8):
            for b in range(2): a(f"v_add_f32 v{t+b}, v{t+b}, v{f+8*b+k}")
        allsum([t, t+1], [t+2, t+3])
        for b in range(2): a(f"v_mul_f32 v{t+b}, {hex(f2u(1/512))}, v{t+b}")
        for b in range(2):
            a(f"v_sub_f32 v{t+4}, v{f+8*b}, v{t+b}\n v_mul_f32 v{t+2+b}, v{t+4}, v{t+4}")
            for k in range(1, 8):
                a(f"v_sub_f32 v{t+4}, v{f+8*b+k}, v{t+b}\n v_fmac_f32 v{t+2+b}, v{t+4}, v{t+4}")
        allsum([t+2, t+3], [t+4, t+5])
        for b in range(2): a(f"v_mul_f32 v{t+2+b}, {hex(f2u(1/512))}, v{t+2+b}")
        a(f"v_cvt_pk_bf16_f32 v{t+4}, v{t}, v{t+1}\n v_cvt_pk_bf16_f32 v{t+5}, v{t+2}, v{t+3}")
        a(f"v_lshlrev_b32 v{t}, 16, v{t+4}\n v_and_b32 v{t+1}, 0xffff0000, v{t+4}")
        a(f"v_lshlrev_b32 v{t+2}, 16, v{t+5}\n v_and_b32 v{t+3}, 0xffff0000, v{t+5}")
        for b in range(2): a(f"v_add_f32 v{t+2+b}, {hex(f2u(1e-5))}, v{t+2+b}")
        a(f"v_cvt_pk_bf16_f32 v{t+5}, v{t+2}, v{t+3}\n v_lshlrev_b32 v{t+2}, 16, v{t+5}\n v_and_b32 v{t+3}, 0xffff0000, v{t+5}")
        for b in range(2): a(f"v_sqrt_f32 v{t+2+b}, v{t+2+b}")
        a(f"v_cvt_pk_bf16_f32 v{t+5}, v{t+2}, v{t+3}\n v_lshlrev_b32 v{t+2}, 16, v{t+5}\n v_and_b32 v{t+3}, 0xffff0000, v{t+5}")
        for b in range(2): a(f"v_rcp_f32 v{t+4+b}, v{t+2+b}")
        for b in range(2):
            for k in range(8): a(f"v_sub_f32 v{f+8*b+k}, v{f+8*b+k}, v{t+b}")
            for k in range(4):
                a(f"v_cvt_pk_bf16_f32 v{t+6}, v{f+8*b+2*k}, v{f+8*b+2*k+1}")
                a(f"v_lshlrev_b32 v{f+8*b+2*k}, 16, v{t+6}\n v_and_b32 v{f+8*b+2*k+1}, 0xffff0000, v{t+6}")
            for k in range(8):
                r = f+8*b+k
                a(f"v_mul_f32 v{t+6}, v{r}, v{t+4+b}\n v_fma_f32 v{t+7}, -v{t+6}, v{t+2+b}, v{r}\n v_fma_f32 v{r}, v{t+7}, v{t+4+b}, v{t+6}")
            for k in range(4):
                a(f"v_cvt_pk_bf16_f32 v{outp+4*b+k}, v{f+8*b+2*k}, v{f+8*b+2*k+1}")
    def gen_derive(vg):
        a(f"""
        v_readfirstlane_b32 s{sGEN}, v{vg}
        s_mul_i32 s{sW32}, s{sGEN}, 0x9E3779B1
        s_add_u32 s{sW32}, s{sW32}, 0x7F4A7C15
        s_mul_i32 s31, s{sGEN}, 167
        """)
        for i, c in enumerate((0x00, 0x55, 0xA3, 0x3C)):
            a(f"s_add_u32 s{sTAU+i}, s31, {c}\n s_and_b32 s{sTAU+i}, s{sTAU+i}, 0xff")

    stamp(0)
    a(f"""
    s_cmp_ge_u32 s2, 256
    s_cbranch_scc1 L_end
    s_load_dwordx16 s[4:19], s[0:1], 0
    s_load_dwordx8 s[20:27], s[0:1], 64
    s_load_dwordx2 s[28:29], s[0:1], 96
    v_lshrrev_b32 v2, 6, v0
    v_and_b32 v1, 63, v0
    v_readfirstlane_b32 s{sW}, v2
    s_and_b32 s31, s2, 7
    s_lshr_b32 s3, s2, 4
    s_lshl_b32 s31, s31, 4
    s_add_u32 s{sIDX}, s31, s3
    v_and_b32 v2, 15, v1
    v_lshrrev_b32 v3, 4, v1
    v_lshlrev_b32 v4, 4, v1
    v_mov_b32 v5, 0
    s_bitcmp1_b32 s2, 3
    s_waitcnt lgkmcnt(0)
    s_mov_b32 s32, s28
    s_mov_b32 s33, s29
    s_mov_b32 s34, {WS_USED}
    s_mov_b32 s35, 0x20000
    s_cbranch_scc1 L_W
    """)
    vL, vN, vG, vL16, vZ = 1, 2, 3, 4, 5
    QB = 131072
    ra = RA(6, 256)
    srd(36, 6, 0x1000000)
    vt0, vt1 = ra(), ra()
    vGen = ra()
    a(f"""
    buffer_load_dword v{vGen}, v{vZ}, {WS}, 0 offen sc1
    s_lshr_b32 s{sB}, s{sIDX}, 6
    s_lshl_b32 s96, s{sIDX}, 17
    s_lshl_b32 s97, s{sW}, 15
    s_add_u32 s96, s96, s97
    """)
    for i in range(32):
        t = vt0 if i % 2 == 0 else vt1
        a(f"v_xor_b32 v{t}, {key32(i) << 4}, v{vL16}\n s_add_u32 m0, s97, {i*1024}\n s_add_u32 s3, s96, {i*1024}\n buffer_load_dwordx4 v{t}, {R1}, s3 offen nt lds")
    stamp(1)
    vA = ra(8); vQ = ra(8); vT = ra(16); vQD = ra(); vCK = ra(); vTQ = ra(4); vTO = ra(4); vMSK = ra(); vMX = ra(); vPW = ra(); vOA = ra(); vH = ra()
    a(f"""
    v_and_b32 v{vH}, 31, v{vL}
    v_and_b32 v{vt0}, 3, v{vL}
    v_lshlrev_b32 v{vt0}, 2, v{vt0}
    v_bfe_u32 v{vt1}, v{vL}, 2, 1
    v_lshl_or_b32 v{vt0}, v{vt1}, 1, v{vt0}
    v_bfe_u32 v{vt1}, v{vL}, 3, 1
    v_or_b32 v{vt0}, v{vt0}, v{vt1}
    v_lshrrev_b32 v{vt1}, 5, v{vL}
    v_xor_b32 v{vt0}, v{vt0}, v{vt1}
    v_lshlrev_b32 v{vt0}, 4, v{vt0}
    v_lshlrev_b32 v{vA}, 10, v{vH}
    v_add_u32 v{vA}, s97, v{vA}
    v_lshlrev_b32 v{vQ}, 8, v{vH}
    v_add_u32 v{vQ}, {QB}, v{vQ}
    """)
    for s in range(7, -1, -1):
        a(f"v_xor_b32 v{vt1}, {s << 5}, v{vt0}\n v_add_u32 v{vA+s}, v{vA}, v{vt1}\n v_add_u32 v{vQ+s}, v{vQ}, v{vt1}")
    a(f"""
    v_lshrrev_b32 v{vt1}, 5, v{vL}
    v_lshlrev_b32 v{vMX}, 5, v{vH}
    v_lshl_add_u32 v{vt1}, v{vt1}, 2, v{vMX}
    v_add_u32 v{vMX}, {QB}, v{vMX}
    s_lshl_b32 s31, s{sW}, 3
    s_add_u32 s31, s31, {QB}
    v_add_u32 v{vCK}, s31, v{vt1}
    """)
    vMXW = vCK; vCK = ra()
    a(f"""
    v_bfe_u32 v{vt0}, v{vL}, 4, 1
    v_lshlrev_b32 v{vt0}, 10, v{vt0}
    v_lshrrev_b32 v{vt1}, 5, v{vL}
    v_lshl_or_b32 v{vt0}, v{vt1}, 8, v{vt0}
    v_lshl_or_b32 v{vt0}, v{vN}, 4, v{vt0}
    s_lshl_b32 s31, s{sW}, 11
    s_add_u32 s31, s31, {QB + 8192}
    v_add_u32 v{vPW}, s31, v{vt0}
    """)
    a(f"""
    v_lshrrev_b32 v{vt0}, 5, v{vL}
    v_lshlrev_b32 v{vt0}, 4, v{vt0}
    v_bfe_u32 v{vt1}, v{vL}, 4, 1
    v_lshl_or_b32 v{vt0}, v{vt1}, 2, v{vt0}
    v_bfe_u32 v{vT+1}, v{vL}, 2, 2
    v_or_b32 v{vt0}, v{vt0}, v{vT+1}
    v_lshlrev_b32 v{vt0}, 10, v{vt0}
    v_and_b32 v{vT+2}, 1, v{vL}
    v_lshl_or_b32 v{vt0}, v{vT+2}, 3, v{vt0}
    s_lshl_b32 s31, s{sW}, 8
    v_add_u32 v{vt0}, s31, v{vt0}
    v_lshlrev_b32 v{vT+1}, 2, v{vT+1}
    v_lshl_or_b32 v{vT+1}, v{vt1}, 1, v{vT+1}
    v_bfe_u32 v{vT+2}, v{vL}, 1, 1
    v_xor_b32 v{vt1}, v{vT+1}, v{vT+2}
    v_lshlrev_b32 v{vt1}, 4, v{vt1}
    """)
    for x in range(16):
        a(f"v_xor_b32 v{vT+x}, {x << 4}, v{vt1}\n v_add_u32 v{vT+x}, v{vT+x}, v{vt0}")
        if x & 1: a(f"v_add_u32 v{vT+x}, 8192, v{vT+x}")
    a(f"""
    v_lshlrev_b32 v{vt0}, 2, v{vG}
    v_xor_b32 v{vt0}, v{vt0}, v{vN}
    v_lshlrev_b32 v{vt0}, 4, v{vt0}
    v_lshl_or_b32 v{vQD}, v{vG}, 8, v{vt0}
    s_lshl_b32 s98, s{sW}, 13
    s_add_u32 s98, s98, {QB}
    v_add_u32 v{vCK}, s98, v{vL16}
    s_mov_b32 s31, {16*OGS}
    v_mul_lo_u32 v{vOA}, v{vG}, s31
    v_lshl_add_u32 v{vOA}, v{vN}, 4, v{vOA}
    v_mov_b32 v{vMSK}, 0xfffefffe
    s_lshl_b32 s99, s{sB}, 15
    s_lshl_b32 s31, s{sW}, 13
    s_add_u32 s99, s99, s31
    s_add_u32 s99, s99, {WS_QG}
    s_waitcnt vmcnt(32)
    """)
    gen_derive(vGen)
    lsb_tags(vTQ, vG, vt0, vt1)
    a(f"v_add_u32 v{vGen}, 11, v{vN}")
    lsb_tags(vTO, vGen, vt0, vt1)
    a(f"s_mov_b32 s{sSPIN}, 0\n s_waitcnt vmcnt(4)")
    stamp(2)
    a("L_A_gather:")
    for i in range(8):
        t = vt0 if i % 2 == 0 else vt1
        kk = ((i & 1) << 1) | ((i >> 1) & 1)
        a(f"v_xor_b32 v{t}, {kk << 4}, v{vQD}\n s_add_u32 m0, s98, {i*1024}\n s_add_u32 s3, s99, {i*1024}\n buffer_load_dwordx4 v{t}, {WS}, s3 offen sc1 lds")
    a("s_waitcnt vmcnt(0)\n s_barrier")
    stamp(3)
    D = 3
    NB = D + 1
    fA = ra(4*NB, 4); fB = ra(4*NB, 4); fC = ra(8, 4); S = ra(16, 4); vBAD = ra()
    a(f"v_mov_b32 v{vBAD}, 0")
    q = []
    def rd_step(s):
        cb, sp = s >> 3, s & 7
        a(f"ds_read_b128 {vr(fA+4*(s%NB),4)}, v{vA+sp} offset:{cb*256}"); q.append(("A", s))
        a(f"ds_read_b128 {vr(fB+4*(s%NB),4)}, v{vQ+sp} offset:{cb*8192}"); q.append(("B", s))
    def wait_for(tag):
        if tag in q:
            k = q.index(tag); n = len(q) - 1 - k
            a(f"s_waitcnt lgkmcnt({n})"); del q[:k+1]
    for s in range(D): rd_step(s)
    chk_issue = {3*i: i for i in range(8)}
    chk_use = {3*i + 2: i for i in range(8)}
    for s in range(32):
        if s in chk_issue:
            i = chk_issue[s]
            a(f"ds_read_b128 {vr(fC+4*(i&1),4)}, v{vCK} offset:{i*1024}"); q.append(("C", i))
        if s + D < 32: rd_step(s + D)
        wait_for(("B", s))
        a(f"v_mfma_f32_32x32x16_bf16 {vr(S,16)}, {vr(fA+4*(s%NB),4)}, {vr(fB+4*(s%NB),4)}, {vr(S,16) if s else 0}")
        if s in chk_use:
            i = chk_use[s]
            wait_for(("C", i))
            for k in range(4): a(f"v_bitop3_b32 v{vBAD}, v{vBAD}, v{fC+4*(i&1)+k}, v{vTQ+k} bitop3:0xf6")
        if s == 24: a("s_barrier")
    vM = ra(); vm8 = ra(8, 4)
    a(f"v_and_b32 v{vBAD}, 0x10001, v{vBAD}\n v_cmp_ne_u32 vcc, 0, v{vBAD}\n v_mov_b32 v{vt1}, 0x7f800000")
    a(f"v_max3_f32 v{vM}, v{S}, v{S+1}, v{S+2}")
    for k in range(3, 15, 2): a(f"v_max3_f32 v{vM}, v{vM}, v{S+k}, v{S+k+1}")
    a(f"v_max_f32 v{vM}, v{vM}, v{S+15}\n v_cndmask_b32 v{vM}, v{vM}, v{vt1}, vcc")
    a(f"""
    ds_write_b32 v{vMXW}, v{vM}
    s_waitcnt lgkmcnt(0)
    s_barrier
    ds_read_b128 {vr(vm8,4)}, v{vMX}
    ds_read_b128 {vr(vm8+4,4)}, v{vMX} offset:16
    s_waitcnt lgkmcnt(1)
    v_max3_f32 v{vM}, v{vm8}, v{vm8+1}, v{vm8+2}
    v_max_f32 v{vM}, v{vM}, v{vm8+3}
    s_waitcnt lgkmcnt(0)
    v_max3_f32 v{vM}, v{vM}, v{vm8+4}, v{vm8+5}
    v_max3_f32 v{vM}, v{vM}, v{vm8+6}, v{vm8+7}
    v_cmp_eq_u32 vcc, v{vM}, v{vt1}
    s_add_u32 s{sSPIN}, s{sSPIN}, 1
    s_cbranch_vccz L_A_ok
    s_cmp_lt_u32 s{sSPIN}, {SPIN}
    s_cbranch_scc0 L_A_ok
    s_barrier
    s_branch L_A_gather
    L_A_ok:
    """)
    stamp(4)
    def tr(ws, u, jh):
        base = (ws*8 + u)*4 + 2*jh
        a(f"ds_read_b64_tr_b16 {ar(base,2)}, v{vT+2*u+jh} offset:{(ws&1)*32768}"); q.append(("T", ws, u, jh))
    trl = [(ws, u, jh) for ws in range(4) for u in range(8) for jh in range(2)]
    NPRE = 12
    for x in trl[:NPRE]: tr(*x)
    vLs = ra(); P = ra(8, 4)
    for k in range(16): a(f"v_sub_f32 v{S+k}, v{S+k}, v{vM}")
    for k in range(16): a(f"v_exp_f32 v{S+k}, v{S+k}")
    for k in range(8): a(f"v_cvt_pk_bf16_f32 v{P+k}, v{S+2*k}, v{S+2*k+1}")
    a(f"ds_write_b128 v{vPW}, {vr(P,4)}\n ds_write_b128 v{vPW}, {vr(P+4,4)} offset:512")
    for k in range(8): a(f"v_add_f32 v{S+k}, v{S+k}, v{S+k+8}")
    for k in range(4): a(f"v_add_f32 v{S+k}, v{S+k}, v{S+k+4}")
    a(f"v_add_f32 v{S}, v{S}, v{S+2}\n v_add_f32 v{S+1}, v{S+1}, v{S+3}\n v_add_f32 v{vLs}, v{S}, v{S+1}")
    a(f"ds_write_b32 v{vMXW}, v{vLs} offset:1024\n s_waitcnt lgkmcnt(0)\n s_barrier")
    q.clear()
    PF = ra(32, 4); O = ra(64, 4); E = ra(16, 4); vPR = ra()
    a(f"v_add_u32 v{vPR}, {QB+8192}, v{vL16}")
    def prd(ws, hh):
        a(f"ds_read_b128 {vr(PF+(hh*4+ws)*4,4)}, v{vPR} offset:{(ws*2+hh)*1024}"); q.append(("P", ws, hh))
    for ws in range(4): prd(ws, 0)
    a(f"s_cmp_lg_u32 s{sW}, 0\n s_cbranch_scc1 L_A_nostat")
    a(f"""
    ds_read_b128 {vr(vm8,4)}, v{vMX} offset:1024
    ds_read_b128 {vr(vm8+4,4)}, v{vMX} offset:1040
    v_lshlrev_b32 v{vt0}, 4, v{vH}
    s_lshl_b32 s3, s{sIDX}, 9
    s_add_u32 s3, s3, {WS_ST}
    v_mov_b32 v{E}, v{vM}
    v_mov_b32 v{E+2}, s{sW32}
    v_mov_b32 v{E+3}, s{sW32}
    s_waitcnt lgkmcnt(0)
    v_add_f32 v{vm8}, v{vm8}, v{vm8+1}
    v_add_f32 v{vm8+2}, v{vm8+2}, v{vm8+3}
    v_add_f32 v{vm8+4}, v{vm8+4}, v{vm8+5}
    v_add_f32 v{vm8+6}, v{vm8+6}, v{vm8+7}
    v_add_f32 v{vm8}, v{vm8}, v{vm8+2}
    v_add_f32 v{vm8+4}, v{vm8+4}, v{vm8+6}
    v_add_f32 v{E+1}, v{vm8}, v{vm8+4}
    s_mov_b32 exec_hi, 0
    buffer_store_dwordx4 {vr(E,4)}, v{vt0}, {WS}, s3 offen sc1
    s_mov_b64 exec, -1
    L_A_nostat:
    """)
    stamp(5)
    nxt = NPRE
    AH = 6
    moved = False
    for ws in range(4):
        for u in range(8):
            need_idx = (ws*8 + u)*2 + 1
            while nxt < 64 and nxt <= need_idx + AH:
                if trl[nxt][0] == 2 and not moved:
                    for x in range(16): a(f"v_add_u32 v{vT+x}, 0x10000, v{vT+x}")
                    moved = True
                tr(*trl[nxt]); nxt += 1
            if ws == 3 and u in (2, 3, 4, 5): prd(u - 2, 1)
            wait_for(("P", ws, 0)); wait_for(("T", ws, u, 1))
            a(f"v_mfma_f32_16x16x32_bf16 {vr(O+4*u,4)}, {vr(PF+4*ws,4)}, {ar((ws*8+u)*4,4)}, {vr(O+4*u,4) if ws else 0}")
    a(f"""
    s_lshl_b32 s96, s{sIDX}, 8
    s_mul_i32 s31, s{sW}, {OGS}
    s_add_u32 s96, s96, s31
    s_add_u32 s96, s96, {WS_OG}
    """)
    def epi(hh):
        ops = []
        for r in range(4):
            for d in range(4):
                ops.append(f"v_cvt_pk_bf16_f32 v{E+4*r+d}, v{O+32*hh+8*d+r}, v{O+32*hh+8*d+4+r}")
                ops.append(f"v_and_or_b32 v{E+4*r+d}, v{E+4*r+d}, v{vMSK}, v{vTO+d}")
            ops.append(f"s_add_u32 s3, s96, {(16*hh + r)*4*OGS}\n buffer_store_dwordx4 {vr(E+4*r,4)}, v{vOA}, {WS}, s3 offen sc1")
        return ops
    e0 = epi(0)
    k = 0
    for ws in range(4):
        for u in range(8):
            wait_for(("P", ws, 1))
            a(f"v_mfma_f32_16x16x32_bf16 {vr(O+32+4*u,4)}, {vr(PF+16+4*ws,4)}, {ar((ws*8+u)*4,4)}, {vr(O+32+4*u,4) if ws else 0}")
            if ws*8 + u >= 8:
                for _ in range(2):
                    if k < len(e0): a(e0[k]); k += 1
    while k < len(e0): a(e0[k]); k += 1
    for op in epi(1): a(op)
    stamp(6)
    if glu:
        a(f"s_cmp_ge_u32 s{sIDX}, 112\n s_cbranch_scc1 L_A_done")
        rg = RA(10, 200)
        X = rg(8, 4); F = rg(16, 4); T = rg(8, 4); XP = rg(8, 4); vD = rg(); vD2 = rg(); XA = rg(16, 4); BG = rg(32, 4); G = rg(8, 4); vR = rg(); vR2 = rg(); BD = rg(16, 4); HA = rg(2, 2); DD = rg(32, 4); EE = rg(16, 4); vM24 = rg()
        srd(40, 18, 512*1792*2); srd(44, 20, 512*1792*2); srd(48, 22, 512*1792*2)
        GB, UB, DB, XB, RB, HB = 0, 16384, 32768, 49152, 57344, 59392
        a(f"""
        s_barrier
        global_load_dwordx4 {vr(X,4)}, v{vL16}, s[4:5]
        global_load_dwordx4 {vr(X+4,4)}, v{vL16}, s[4:5] offset:1024
        v_lshrrev_b32 v{vD}, 1, v{vL}
        v_mul_u32_u24 v{vD}, 3584, v{vD}
        v_and_b32 v{vD2}, 1, v{vL}
        v_lshl_add_u32 v{vD}, v{vD2}, 4, v{vD}
        s_mul_i32 s96, s{sW}, {128*3584}
        s_lshl_b32 s31, s{sIDX}, 5
        s_add_u32 s96, s96, s31
        s_lshl_b32 s97, s{sW}, 12
        """)
        for i in range(4):
            for mat, (R, LB) in enumerate(((R2, GB), (R3, UB))):
                a(f"s_add_u32 m0, s97, {LB + i*1024}\n s_add_u32 s3, s96, {i*32*3584}\n buffer_load_dwordx4 v{vD}, {R}, s3 offen nt lds")
        a(f"""
        v_lshlrev_b32 v{vD2}, 2, v{vG}
        v_xor_b32 v{vD2}, v{vD2}, v{vN}
        v_lshlrev_b32 v{vD2}, 4, v{vD2}
        v_lshl_or_b32 v{vD2}, v{vG}, 10, v{vD2}
        s_lshl_b32 s96, s{sIDX}, 14
        s_lshl_b32 s31, s{sW}, 8
        s_add_u32 s96, s96, s31
        """)
        for i in range(4):
            a(f"v_xor_b32 v{vD}, {(i&1) << 5}, v{vD2}\n s_add_u32 m0, s97, {DB + i*1024}\n s_add_u32 s3, s96, {i*4096}\n buffer_load_dwordx4 v{vD}, {R4}, s3 offen nt lds")
        a("s_waitcnt vmcnt(12)")
        layernorm(X, F, T, XP)
        a(f"""
        s_lshl_b32 s31, s{sW}, 11
        s_add_u32 s31, s31, {XB}
        v_add_u32 v{vD}, s31, v{vL16}
        ds_write_b128 v{vD}, {vr(XP,4)}
        ds_write_b128 v{vD}, {vr(XP+4,4)} offset:1024
        v_and_b32 v{vD}, 1, v{vL}
        v_lshlrev_b32 v{vD}, 10, v{vD}
        v_lshl_add_u32 v{vD}, v{vG}, 4, v{vD}
        s_lshl_b32 s3, s{sW}, 8
        s_add_u32 s31, s31, s3
        v_add_u32 v{vD}, s31, v{vD}
        s_waitcnt lgkmcnt(0)
        """)
        for s in range(4): a(f"ds_read_b128 {vr(XA+4*s,4)}, v{vD} offset:{s*64}")
        a(f"""
        v_lshlrev_b32 v{vR}, 8, v{vG}
        v_lshl_add_u32 v{vR}, v{vN}, 3, v{vR}
        v_add_u32 v{vR}, s97, v{vR}
        s_waitcnt vmcnt(4)
        """)
        for mat, LB in enumerate((GB, UB)):
            for s in range(4):
                for jh in range(2):
                    a(f"ds_read_b64_tr_b16 {vr(BG+16*mat+4*s+2*jh,2)}, v{vR} offset:{LB + s*1024 + jh*128}")
            a("s_waitcnt lgkmcnt(0)")
            for s in range(4):
                a(f"v_mfma_f32_16x16x32_bf16 {vr(G+4*mat,4)}, {vr(XA+4*s,4)}, {vr(BG+16*mat+4*s,4)}, {vr(G+4*mat,4) if s else 0}")
        a(f"""
        v_lshlrev_b32 v{vR2}, 4, v{vN}
        s_lshl_b32 s31, s{sW}, 8
        s_add_u32 s31, s31, {RB}
        v_add_u32 v{vD}, s31, v{vR2}
        v_mov_b32 v{G+2}, v{G+4}
        v_mov_b32 v{G+3}, v{G+5}
        s_mov_b32 exec_lo, 0xffff
        s_mov_b32 exec_hi, 0
        ds_write_b128 v{vD}, {vr(G,4)}
        s_mov_b64 exec, -1
        s_waitcnt vmcnt(0) lgkmcnt(0)
        s_barrier
        """)
        for ww in range(4): a(f"ds_read_b128 {vr(F+4*ww,4)}, v{vR2} offset:{RB + ww*256}")
        a(f"""
        v_bfe_u32 v{vD}, v{vL}, 2, 2
        v_lshlrev_b32 v{vD2}, 2, v{vD}
        v_and_b32 v{vR}, 1, v{vG}
        v_lshl_or_b32 v{vD2}, v{vR}, 1, v{vD2}
        v_bfe_u32 v{vR}, v{vL}, 1, 1
        v_xor_b32 v{vD2}, v{vD2}, v{vR}
        v_lshlrev_b32 v{vD2}, 4, v{vD2}
        v_lshlrev_b32 v{vD}, 8, v{vD}
        v_lshl_or_b32 v{vD}, v{vG}, 10, v{vD}
        v_and_b32 v{vR}, 1, v{vL}
        v_lshl_or_b32 v{vD}, v{vR}, 3, v{vD}
        s_add_u32 s31, s97, {DB}
        v_add_u32 v{vD}, s31, v{vD}
        """)
        for u in range(8):
            a(f"v_xor_b32 v{vR}, {u << 5}, v{vD2}\n v_add_u32 v{vR}, v{vR}, v{vD}\n ds_read_b64_tr_b16 {vr(BD+2*u,2)}, v{vR}")
        a("s_waitcnt lgkmcnt(8)")
        for k in range(4): a(f"v_add_f32 v{F+k}, v{F+k}, v{F+4+k}\n v_add_f32 v{F+8+k}, v{F+8+k}, v{F+12+k}")
        for k in range(4): a(f"v_add_f32 v{F+k}, v{F+k}, v{F+8+k}")
        a(f"""
        v_cvt_pk_bf16_f32 v{F+4}, v{F}, v{F+1}
        v_cvt_pk_bf16_f32 v{F+5}, v{F+2}, v{F+3}
        v_lshlrev_b32 v{F}, 16, v{F+4}
        v_and_b32 v{F+1}, 0xffff0000, v{F+4}
        v_lshlrev_b32 v{F+2}, 16, v{F+5}
        v_and_b32 v{F+3}, 0xffff0000, v{F+5}
        v_mul_f32 v{F}, v{F}, v{F+2}
        v_mul_f32 v{F+1}, v{F+1}, v{F+3}
        v_cvt_pk_bf16_f32 v{F}, v{F}, v{F+1}
        s_lshl_b32 s31, s{sW}, 6
        s_add_u32 s31, s31, {HB}
        v_lshlrev_b32 v{vR}, 1, v{vN}
        v_add_u32 v{vR}, s31, v{vR}
        ds_write_b16 v{vR}, v{F}
        ds_write_b16_d16_hi v{vR}, v{F} offset:32
        v_and_b32 v{vR}, 1, v{vL}
        v_lshlrev_b32 v{vR}, 5, v{vR}
        v_lshl_add_u32 v{vR}, v{vG}, 3, v{vR}
        v_add_u32 v{vR}, s31, v{vR}
        s_waitcnt lgkmcnt(0)
        ds_read_b64 {vr(HA,2)}, v{vR}
        v_mov_b32 v{vM24}, 0xffffff00
        v_lshrrev_b32 v{vD}, 3, v{vN}
        v_mul_u32_u24 v{vD}, {FPS}, v{vD}
        v_and_b32 v{vD2}, 7, v{vN}
        v_lshl_add_u32 v{vD}, v{vD2}, 4, v{vD}
        s_mul_i32 s96, s{sW}, {8*FPS}
        s_lshl_b32 s31, s{sIDX}, 7
        s_add_u32 s96, s96, s31
        s_add_u32 s96, s96, {WS_FP + 128*128}
        s_waitcnt lgkmcnt(0)
        """)
        for u in range(8): a(f"v_mfma_f32_16x16x16_bf16 {vr(DD+4*u,4)}, {vr(HA,2)}, {vr(BD+2*u,2)}, 0")
        a("s_mov_b32 exec_lo, 0xffff\n s_mov_b32 exec_hi, 0")
        for k in range(4):
            for d in range(4): a(f"v_and_or_b32 v{EE+4*k+d}, v{DD+4*(2*k+(d>>1))+(d&1)}, v{vM24}, s{sTAU+d}")
            a(f"s_add_u32 s3, s96, {2*k*FPS}\n buffer_store_dwordx4 {vr(EE+4*k,4)}, v{vD}, {WS}, s3 offen sc1")
        a("s_mov_b64 exec, -1")
    a("L_A_done:")
    stamp(7)
    a("s_branch L_fin")

    a("L_W:")
    UK, WO, XN, QP, QO, WB, CC, CT, RD = 98304, 0, 131072, 139264, 144384, 144896, 145920, 148480, 149504
    ra = RA(6, 256)
    vt0, vt1, vGen = ra(), ra(), ra()
    MU = ra(4, 4); X = ra(8, 4); F = ra(16, 4); T = ra(8, 4); XP = ra(8, 4); XR = ra(16, 4); OH = ra(8, 4); ACC = ra(4, 4); vWQ = ra(); vUK = ra()
    srd(36, 8, 0x400000); srd(40, 10, 0x400000); srd(44, 12, 0x400000); srd(48, 14, 0x400000)
    a(f"""
    buffer_load_dword v{vGen}, v{vZ}, {WS}, 0 offen sc1
    global_load_dwordx4 {vr(X,4)}, v{vL16}, s[4:5]
    global_load_dwordx4 {vr(X+4,4)}, v{vL16}, s[4:5] offset:1024
    s_lshr_b32 s{sH}, s{sIDX}, 2
    s_and_b32 s{sJ}, s{sIDX}, 3
    s_lshl_b32 s96, s{sH}, 8
    s_lshl_b32 s31, s{sW}, 18
    s_add_u32 s31, s31, s96
    v_lshlrev_b32 v{vWQ}, 16, v{vG}
    v_lshl_add_u32 v{vWQ}, v{vN}, 4, v{vWQ}
    v_add_u32 v{vWQ}, s31, v{vWQ}
    s_lshl_b32 s97, s{sJ}, 20
    """)
    def wq_load(s):
        if s % 8 == 0 and s: a(f"s_add_u32 s97, s97, 0x100000\n s_and_b32 s97, s97, 0x3fffff")
        a(f"s_add_u32 s3, s97, {(s&7)*8192}\n buffer_load_dwordx4 {ar(4*s,4)}, v{vWQ}, {R1}, s3 offen nt")
    for s in range(8): wq_load(s)
    a(f"""
    v_xor_b32 v{vUK}, v{vN}, v{vG}
    v_lshlrev_b32 v{vUK}, 4, v{vUK}
    v_lshl_or_b32 v{vUK}, v{vG}, 13, v{vUK}
    s_lshl_b32 s98, s{sJ}, 20
    s_lshl_b32 s31, s{sW}, 18
    s_add_u32 s98, s98, s31
    s_add_u32 s98, s98, s96
    s_lshl_b32 s99, s{sW}, 13
    s_add_u32 s99, s99, {UK}
    """)
    for i in range(8):
        t = vt0 if i % 2 == 0 else vt1
        a(f"v_xor_b32 v{t}, {(i>>1) << 6}, v{vUK}\n s_add_u32 m0, s99, {i*1024}\n s_add_u32 s3, s98, {i*4*8192}\n buffer_load_dwordx4 v{t}, {R2}, s3 offen nt lds")
    for s in range(8, 32): wq_load(s)
    stamp(1)
    a("s_waitcnt vmcnt(40)")
    gen_derive(vGen)
    layernorm(X, F, T, XP)
    a(f"""
    s_lshl_b32 s31, s{sW}, 11
    s_add_u32 s31, s31, {XN}
    v_add_u32 v{vt0}, s31, v{vL16}
    ds_write_b128 v{vt0}, {vr(XP,4)}
    ds_write_b128 v{vt0}, {vr(XP+4,4)} offset:1024
    v_bfe_u32 v{vt0}, v{vL}, 3, 1
    v_lshlrev_b32 v{vt0}, 10, v{vt0}
    v_lshl_add_u32 v{vt0}, v{vG}, 4, v{vt0}
    s_lshl_b32 s3, s{sW}, 6
    s_add_u32 s31, s31, s3
    v_add_u32 v{vt0}, s31, v{vt0}
    s_waitcnt lgkmcnt(0)
    """)
    for t in range(4):
        a(f"s_add_u32 s3, s{sJ}, {t}\n s_and_b32 s3, s3, 3\n s_lshl_b32 s3, s3, 8\n v_add_u32 v{vt1}, s3, v{vt0}\n ds_read_b128 {vr(XR+4*t,4)}, v{vt1}")
    a(f"""
    v_and_b32 v{vt0}, 1, v{vL}
    v_lshlrev_b32 v{vt0}, 4, v{vt0}
    v_lshlrev_b32 v{vt0}, v{vt0}, 1
    v_bfe_u32 v{vt1}, v{vL}, 1, 2
    """)
    for r in range(4): a(f"v_cmp_eq_u32 vcc, {r}, v{vt1}\n v_cndmask_b32 v{MU+r}, 0, v{vt0}, vcc")
    def onehot(dst, src, half):
        for r in range(4):
            a(f"v_mul_u32_u24_sdwa v{dst+r}, v{src}, v{MU+r} dst_sel:DWORD dst_unused:UNUSED_PAD src0_sel:WORD_{half} src1_sel:DWORD")
    a("s_waitcnt lgkmcnt(0)")
    onehot(OH, XR, 0)
    for s in range(32):
        if s + 1 < 32: onehot(OH + 4*((s+1)&1), XR + ((s+1) >> 1), (s+1) & 1)
        a(f"s_waitcnt vmcnt({(7 - s) + 32 if s < 8 else 31 - s})")
        a(f"v_mfma_f32_16x16x32_bf16 {vr(ACC,4)}, {vr(OH+4*(s&1),4)}, {ar(4*s,4)}, {vr(ACC,4) if s else 0}")
    stamp(2)
    UA = ra(32, 4); QF = ra(16, 4); D2 = ra(8, 4); vTQ = ra(4, 4); vMSK = ra()
    a(f"""
    v_lshrrev_b32 v{vt0}, 2, v{vN}
    v_lshlrev_b32 v{vt0}, 3, v{vt0}
    v_and_or_b32 v{vt0}, v{vN}, 3, v{vt0}
    v_lshlrev_b32 v{vt0}, 8, v{vt0}
    v_add_u32 v{vt0}, s99, v{vt0}
    v_xor_b32 v{vt1}, v{vN}, v{vG}
    v_lshlrev_b32 v{vt1}, 4, v{vt1}
    """)
    for s in range(4):
        a(f"v_xor_b32 v{T}, {s << 6}, v{vt1}\n v_add_u32 v{T}, v{T}, v{vt0}")
        for u in range(2): a(f"ds_read_b128 {vr(UA+16*u+4*s,4)}, v{T} offset:{u*1024}")
    a(f"""
    v_lshrrev_b32 v{vt0}, 5, v{vL}
    s_lshl_b32 s31, s{sW}, 1
    v_add_u32 v{vt0}, s31, v{vt0}
    v_mul_u32_u24 v{vt0}, 272, v{vt0}
    v_lshl_add_u32 v{vt0}, v{vN}, 4, v{vt0}
    v_and_b32 v{vt1}, 1, v{vG}
    v_lshl_add_u32 v{vt0}, v{vt1}, 3, v{vt0}
    v_add_u32 v{vt0}, {QP}, v{vt0}
    v_cvt_pk_bf16_f32 v{T}, v{ACC}, v{ACC+1}
    v_cvt_pk_bf16_f32 v{T+1}, v{ACC+2}, v{ACC+3}
    ds_write_b64 v{vt0}, {vr(T,2)}
    """)
    for k in range(2):
        a(f"v_lshlrev_b32 v{T+2}, 16, v{T+k}\n v_and_b32 v{T+3}, 0xffff0000, v{T+k}\n v_sub_f32 v{T+2}, v{ACC+2*k}, v{T+2}\n v_sub_f32 v{T+3}, v{ACC+2*k+1}, v{T+3}\n v_cvt_pk_bf16_f32 v{T+4+k}, v{T+2}, v{T+3}")
    a(f"""
    ds_write_b64 v{vt0}, {vr(T+4,2)} offset:{8*272}
    v_mul_u32_u24 v{vt1}, 272, v{vN}
    v_lshl_add_u32 v{vt1}, v{vG}, 4, v{vt1}
    v_add_u32 v{vt1}, {QP}, v{vt1}
    s_waitcnt lgkmcnt(0)
    s_barrier
    """)
    for s in range(4): a(f"ds_read_b128 {vr(QF+4*s,4)}, v{vt1} offset:{s*64}")
    a(f"s_and_b32 s31, s{sH}, 3\n v_mov_b32 v{vGen}, s31")
    lsb_tags(vTQ, vGen, vt0, vt1)
    a(f"v_mov_b32 v{vMSK}, 0xfffefffe")
    for s in range(4):
        a(f"s_waitcnt lgkmcnt({3-s})")
        for u in range(2): a(f"v_mfma_f32_16x16x32_bf16 {vr(D2+4*u,4)}, {vr(UA+16*u+4*s,4)}, {vr(QF+4*s,4)}, {vr(D2+4*u,4) if s else 0}")
    a(f"""
    v_lshlrev_b32 v{vt0}, 8, v{vN}
    v_lshl_add_u32 v{vt0}, v{vG}, 4, v{vt0}
    s_lshl_b32 s31, s{sW}, 6
    s_add_u32 s31, s31, {QO}
    v_add_u32 v{vt0}, s31, v{vt0}
    s_mov_b32 s31, {hex(f2u(SCALE))}
    """)
    for sh in (8, 4, 2):
        for k in range(8): a(f"v_add_f32_dpp v{D2+k}, v{D2+k}, v{D2+k} row_ror:{sh} row_mask:0xf bank_mask:0xf")
    for k in range(8): a(f"v_mul_f32 v{D2+k}, s31, v{D2+k}")
    for k in range(4): a(f"v_cvt_pk_bf16_f32 v{T+k}, v{D2+2*k}, v{D2+2*k+1}\n v_and_or_b32 v{T+k}, v{T+k}, v{vMSK}, v{vTQ+k}")
    a(f"""
    s_mov_b32 exec_lo, 0x00030003
    s_mov_b32 exec_hi, 0x00030003
    ds_write_b128 v{vt0}, {vr(T,4)}
    s_mov_b64 exec, -1
    s_waitcnt lgkmcnt(0)
    s_barrier
    s_cmp_lg_u32 s{sW}, 0
    s_cbranch_scc1 L_W_nopub
    v_add_u32 v{vt0}, {QO}, v{vL16}
    ds_read_b128 {vr(T,4)}, v{vt0}
    v_and_b32 v{vt1}, 1, v{vG}
    v_lshlrev_b32 v{vt1}, 15, v{vt1}
    v_lshl_add_u32 v{vt1}, v{vN}, 4, v{vt1}
    s_lshl_b32 s3, s{sJ}, 13
    s_add_u32 s3, s3, s96
    s_add_u32 s3, s3, {WS_QG}
    s_mov_b32 exec_hi, 0
    s_waitcnt lgkmcnt(0)
    buffer_store_dwordx4 {vr(T,4)}, v{vt1}, {WS}, s3 offen sc1
    s_mov_b64 exec, -1
    L_W_nopub:
    """)
    stamp(3)
    ra = RA(MU + 4 + 48, 256)
    MU2 = MU
    vUV = ra(); vWO = ra(); vTU = ra(2, 2); vTW = ra(8, 4)
    a(f"""
    v_and_b32 v{vt0}, 1, v{vG}
    v_lshlrev_b32 v{vt0}, 1, v{vt0}
    v_xor_b32 v{vt0}, v{vt0}, v{vN}
    s_lshl_b32 s31, s{sW}, 3
    s_and_b32 s31, s31, 8
    v_xor_b32 v{vt0}, s31, v{vt0}
    v_lshlrev_b32 v{vt0}, 4, v{vt0}
    v_lshl_or_b32 v{vUV}, v{vG}, 13, v{vt0}
    """)
    for i in range(8):
        t = vt0 if i % 2 == 0 else vt1
        a(f"v_xor_b32 v{t}, {(i>>2) << 6}, v{vUV}\n s_add_u32 m0, s99, {i*1024}\n s_add_u32 s3, s98, {i*4*8192}\n buffer_load_dwordx4 v{t}, {R3}, s3 offen nt lds")
    a(f"""
    v_lshlrev_b32 v{vt0}, 2, v{vG}
    v_xor_b32 v{vt0}, v{vt0}, v{vN}
    v_lshlrev_b32 v{vt0}, 4, v{vt0}
    v_lshl_or_b32 v{vWO}, v{vG}, 10, v{vt0}
    s_lshl_b32 s31, s{sH}, 17
    s_lshl_b32 s3, s{sW}, 8
    s_add_u32 s31, s31, s3
    v_add_u32 v{vWO}, s31, v{vWO}
    s_lshl_b32 s97, s{sJ}, 15
    s_mul_i32 s100, s{sW}, 24576
    """)
    def wo_load(ii):
        t = vt0 if ii % 2 == 0 else vt1
        if ii % 8 == 0 and ii: a("s_add_u32 s97, s97, 0x8000\n s_and_b32 s97, s97, 0x1ffff")
        a(f"v_xor_b32 v{t}, {((ii>>1)&1) << 5}, v{vWO}\n s_add_u32 m0, s100, {WO + (ii % 24)*1024}\n s_add_u32 s3, s97, {(ii&7)*4096}\n buffer_load_dwordx4 v{t}, {R4}, s3 offen nt lds")
    for ii in range(24): wo_load(ii)
    a(f"""
    v_bfe_u32 v{vTW}, v{vL}, 2, 2
    v_and_b32 v{vTW+1}, 1, v{vG}
    v_lshlrev_b32 v{vt1}, 2, v{vTW}
    v_lshl_or_b32 v{vt1}, v{vTW+1}, 1, v{vt1}
    v_bfe_u32 v{vTW+1}, v{vL}, 1, 1
    v_xor_b32 v{vt1}, v{vt1}, v{vTW+1}
    v_and_b32 v{vTW+1}, 1, v{vL}
    v_lshlrev_b32 v{vTW+1}, 3, v{vTW+1}
    v_lshlrev_b32 v{vt0}, 4, v{vTW}
    v_add_u32 v{vt0}, v{vt0}, v{vG}
    v_lshl_or_b32 v{vt0}, v{vt0}, 8, v{vTW+1}
    v_add_u32 v{vt0}, {UK}, v{vt0}
    s_lshl_b32 s31, s{sW}, 2
    v_xor_b32 v{vTW+2}, s31, v{vt1}
    v_lshl_add_u32 v{vTU}, v{vTW+2}, 4, v{vt0}
    v_xor_b32 v{vTW+2}, 2, v{vTW+2}
    v_lshl_add_u32 v{vTU+1}, v{vTW+2}, 4, v{vt0}
    v_lshlrev_b32 v{vt0}, 11, v{vG}
    v_lshl_or_b32 v{vt0}, v{vTW}, 8, v{vt0}
    v_or_b32 v{vt0}, v{vt0}, v{vTW+1}
    v_add_u32 v{vt0}, s100, v{vt0}
    v_lshlrev_b32 v{vt1}, 4, v{vt1}
    """)
    for u in range(8): a(f"v_xor_b32 v{vTW+u}, {u << 5}, v{vt1}\n v_add_u32 v{vTW+u}, v{vTW+u}, v{vt0}")
    a("s_waitcnt vmcnt(24)\n s_barrier")
    for u in range(2):
        for Tk in range(4):
            for jh in range(2):
                a(f"ds_read_b64_tr_b16 {ar(128+(u*4+Tk)*4+2*jh,2)}, v{vTU+u} offset:{jh*16384 + Tk*1024}")
        a("s_waitcnt lgkmcnt(0)")
    def wo_tr(TT):
        for u in range(8):
            for jh in range(2):
                a(f"ds_read_b64_tr_b16 {ar((TT*8+u)*4+2*jh,2)}, v{vTW+u} offset:{WO + ((TT*8) % 24 + jh)*1024}")
            if u == 3: a("s_waitcnt lgkmcnt(0)")
        a("s_waitcnt lgkmcnt(0)")
    a("s_waitcnt vmcnt(16)"); wo_tr(0)
    for ii in range(24, 32): wo_load(ii)
    a("s_waitcnt vmcnt(16)"); wo_tr(1)
    a("s_waitcnt vmcnt(8)"); wo_tr(2)
    a("s_waitcnt vmcnt(0)"); wo_tr(3)
    stamp(4)
    SG = ra(4, 4); vSA = ra(); vOL = ra(); vTO = ra(4, 4); OP = ra(32, 4); OHC = ra(32, 4); WR = ra(4, 4); D1 = ra(4, 4); vBAD = ra(); e_ = ra(); t2 = ra(); M_ = ra()
    a(f"""
    s_lshr_b32 s{sB}, s{sW}, 1
    s_lshl_b32 s31, s{sB}, 15
    s_lshl_b32 s3, s{sH}, 4
    s_add_u32 s31, s31, s3
    s_add_u32 s31, s31, {WS_ST}
    v_lshlrev_b32 v{vSA}, 9, v{vL}
    v_add_u32 v{vSA}, s31, v{vSA}
    v_lshlrev_b32 v{vOL}, 11, v{vG}
    v_lshl_add_u32 v{vOL}, v{vN}, 4, v{vOL}
    s_mul_i32 s96, s{sIDX}, {OGS}
    s_lshl_b32 s31, s{sW}, 13
    s_add_u32 s96, s96, s31
    s_add_u32 s96, s96, {WS_OG}
    v_add_u32 v{vGen}, 11, v{vN}
    """)
    lsb_tags(vTO, vGen, vt0, vt1)
    a(f"""
    s_mov_b32 s{sSPIN}, 0
    L_W_poll:
    buffer_load_dwordx4 {vr(SG,4)}, v{vSA}, {WS}, 0 offen sc1
    s_add_u32 s{sSPIN}, s{sSPIN}, 1
    s_waitcnt vmcnt(0)
    v_cmp_ne_u32 vcc, s{sW32}, v{SG+2}
    s_cmp_lt_u32 s{sSPIN}, {SPIN*4}
    s_cbranch_scc0 L_W_got
    s_cbranch_vccnz L_W_poll
    L_W_got:
    s_mov_b32 s{sSPIN}, 0
    """)
    stamp(5)
    def o_loads():
        for s in range(8): a(f"s_add_u32 s3, s96, {s*256}\n buffer_load_dwordx4 {vr(OP+4*s,4)}, v{vOL}, {WS}, s3 offen sc1")
    o_loads()
    a(f"v_mov_b32 v{M_}, v{SG}")
    allmax(M_, t2)
    a(f"v_sub_f32 v{e_}, v{SG}, v{M_}\n v_exp_f32 v{e_}, v{e_}\n v_mul_f32 v{M_}, v{e_}, v{SG+1}")
    allsum([M_], [t2])
    a(f"""
    v_rcp_f32 v{M_}, v{M_}
    s_lshl_b32 s31, s{sW}, 8
    s_add_u32 s31, s31, {WB}
    v_lshl_add_u32 v{vt0}, v{vL}, 1, s31
    v_mul_f32 v{e_}, v{e_}, v{M_}
    v_cvt_pk_bf16_f32 v{t2}, v{e_}, v{e_}
    v_and_b32 v{M_}, 0xffff0000, v{t2}
    v_sub_f32 v{e_}, v{e_}, v{M_}
    v_cvt_pk_bf16_f32 v{e_}, v{e_}, v{e_}
    ds_write_b16 v{vt0}, v{t2}
    ds_write_b16 v{vt0}, v{e_} offset:128
    v_bfe_u32 v{vt0}, v{vL}, 3, 1
    v_lshlrev_b32 v{vt0}, 7, v{vt0}
    v_lshl_add_u32 v{vt0}, v{vG}, 4, v{vt0}
    s_and_b32 s3, s{sW}, 1
    s_lshl_b32 s3, s3, 6
    s_add_u32 s31, s31, s3
    v_add_u32 v{vt0}, s31, v{vt0}
    s_waitcnt lgkmcnt(0)
    ds_read_b128 {vr(WR,4)}, v{vt0}
    s_waitcnt lgkmcnt(0)
    """)
    for s in range(8): onehot(OHC + 4*s, WR + (s >> 1), s & 1)
    vCCW = ra(); vCCR = ra(); vCTW = ra(); vCTR = ra(4, 4); vFP = ra(); vM24 = ra()
    a(f"""
    v_lshrrev_b32 v{vt0}, 5, v{vL}
    v_lshlrev_b32 v{vt0}, 1, v{vt0}
    s_lshl_b32 s31, s{sB}, 2
    s_and_b32 s3, s{sW}, 1
    s_add_u32 s31, s31, s3
    v_add_u32 v{vt0}, s31, v{vt0}
    v_mul_u32_u24 v{vt0}, 272, v{vt0}
    v_lshl_add_u32 v{vt0}, v{vN}, 4, v{vt0}
    v_and_b32 v{vt1}, 1, v{vG}
    v_lshl_add_u32 v{vt0}, v{vt1}, 3, v{vt0}
    v_add_u32 v{vCCW}, {CC}, v{vt0}
    v_lshrrev_b32 v{vt0}, 3, v{vN}
    v_lshlrev_b32 v{vt0}, 2, v{vt0}
    v_and_or_b32 v{vt0}, v{vN}, 3, v{vt0}
    v_mul_u32_u24 v{vt0}, 272, v{vt0}
    v_lshl_add_u32 v{vt0}, v{vG}, 4, v{vt0}
    v_add_u32 v{vCCR}, {CC}, v{vt0}
    v_lshrrev_b32 v{vt0}, 5, v{vL}
    v_mul_u32_u24 v{vt0}, 272, v{vt0}
    v_lshl_add_u32 v{vt0}, v{vt1}, 5, v{vt0}
    v_lshl_add_u32 v{vt0}, v{vN}, 1, v{vt0}
    s_lshl_b32 s31, s{sW}, 6
    s_add_u32 s31, s31, {CT}
    v_add_u32 v{vCTW}, s31, v{vt0}
    v_and_b32 v{vt0}, 1, v{vL}
    v_mul_u32_u24 v{vt0}, 272, v{vt0}
    v_lshl_add_u32 v{vt0}, v{vG}, 4, v{vt0}
    """)
    for TT in range(4):
        a(f"s_add_u32 s3, s{sJ}, {TT}\n s_and_b32 s3, s3, 3\n s_lshl_b32 s3, s3, 6\n s_add_u32 s3, s3, {CT}\n v_add_u32 v{vCTR+TT}, s3, v{vt0}")
    a(f"""
    v_mov_b32 v{vM24}, 0xffffff00
    v_lshrrev_b32 v{vFP}, 3, v{vN}
    v_mul_u32_u24 v{vFP}, {FPS}, v{vFP}
    v_and_b32 v{vt0}, 7, v{vN}
    v_lshl_add_u32 v{vFP}, v{vt0}, 4, v{vFP}
    s_mul_i32 s97, s{sW}, {8*FPS}
    s_lshl_b32 s31, s{sIDX}, 7
    s_add_u32 s97, s97, s31
    s_add_u32 s97, s97, {WS_FP}
    L_W_comb:
    v_mov_b32 v{vBAD}, 0
    """)
    for s in range(8):
        a(f"s_waitcnt vmcnt({7-s})")
        a(f"v_mfma_f32_16x16x32_bf16 {vr(D1,4)}, {vr(OHC+4*s,4)}, {vr(OP+4*s,4)}, {vr(D1,4) if s else 0}")
        for k in range(4): a(f"v_bitop3_b32 v{vBAD}, v{vBAD}, v{OP+4*s+k}, v{vTO+k} bitop3:0xf6")
    a(f"""
    v_and_b32 v{vBAD}, 0x10001, v{vBAD}
    v_cmp_ne_u32 vcc, 0, v{vBAD}
    s_add_u32 s{sSPIN}, s{sSPIN}, 1
    s_cbranch_vccz L_W_cok
    s_cmp_lt_u32 s{sSPIN}, {SPIN}
    s_cbranch_scc0 L_W_cok
    """)
    o_loads()
    a("s_branch L_W_comb\n L_W_cok:")
    stamp(6)
    AF = ra(16, 4); D3 = ra(32, 4); EE = ra(16, 4)
    a(f"""
    v_cvt_pk_bf16_f32 v{WR}, v{D1}, v{D1+1}
    v_cvt_pk_bf16_f32 v{WR+1}, v{D1+2}, v{D1+3}
    ds_write_b64 v{vCCW}, {vr(WR,2)}
    s_waitcnt lgkmcnt(0)
    s_barrier
    """)
    for Tk in range(4): a(f"ds_read_b128 {vr(AF+4*Tk,4)}, v{vCCR} offset:{Tk*64}")
    for Tk in range(4):
        a(f"s_waitcnt lgkmcnt({3-Tk})")
        for u in range(2): a(f"v_mfma_f32_16x16x32_bf16 {vr(D3+4*u,4)}, {vr(AF+4*Tk,4)}, {ar(128+(u*4+Tk)*4,4)}, {vr(D3+4*u,4) if Tk else 0}")
    a(f"v_and_b32 v{vt1}, 1, v{vG}\n v_cmp_eq_u32 vcc, 1, v{vt1}")
    for u in range(2): a(f"v_add_f32 v{D3+4*u}, v{D3+4*u}, v{D3+4*u+1}\n v_add_f32 v{D3+4*u+2}, v{D3+4*u+2}, v{D3+4*u+3}")
    for u in range(2): a(f"v_add_f32 v{D3+4*u}, v{D3+4*u}, v{D3+4*u+2}")
    a(f"""
    v_cndmask_b32 v{vt0}, v{D3}, v{D3+4}, vcc
    v_cvt_pk_bf16_f32 v{vt0}, v{vt0}, v{vt0}
    ds_write_b16 v{vCTW}, v{vt0}
    s_waitcnt lgkmcnt(0)
    s_barrier
    """)
    for TT in range(4): a(f"ds_read_b128 {vr(AF+4*TT,4)}, v{vCTR+TT}")
    for k in range(4):
        for TT in range(4):
            if k == 0: a(f"s_waitcnt lgkmcnt({3-TT})")
            for u in (2*k, 2*k+1): a(f"v_mfma_f32_16x16x32_bf16 {vr(D3+4*u,4)}, {vr(AF+4*TT,4)}, {ar((TT*8+u)*4,4)}, {vr(D3+4*u,4) if TT else 0}")
    a("s_mov_b32 exec_lo, 0xffff\n s_mov_b32 exec_hi, 0")
    for k in range(4):
        for d in range(4): a(f"v_and_or_b32 v{EE+4*k+d}, v{D3+4*(2*k+(d>>1))+(d&1)}, v{vM24}, s{sTAU+d}")
        a(f"s_add_u32 s3, s97, {2*k*FPS}\n buffer_store_dwordx4 {vr(EE+4*k,4)}, v{vFP}, {WS}, s3 offen sc1")
    a("s_mov_b64 exec, -1")
    stamp(7)
    G0 = OP; G1 = OP + 4; vFA = ra(); vXO = ra(); vXV = ra()
    NG = 112 if glu else 0
    a(f"""
    v_lshrrev_b32 v{vFA}, 1, v0
    v_lshlrev_b32 v{vFA}, 7, v{vFA}
    v_and_b32 v{vt0}, 1, v0
    v_lshl_add_u32 v{vFA}, v{vt0}, 4, v{vFA}
    s_mul_i32 s96, s{sH}, {FPS}
    s_lshl_b32 s31, s{sJ}, 5
    s_add_u32 s96, s96, s31
    s_add_u32 s96, s96, {WS_FP}
    s_add_u32 s98, s96, {128*128}
    s_lshr_b32 s31, s{sH}, 1
    s_lshl_b32 s31, s31, 5
    s_and_b32 s3, s{sH}, 1
    s_lshl_b32 s3, s3, 3
    s_add_u32 s31, s31, s3
    s_lshl_b32 s3, s{sJ}, 1
    s_add_u32 s31, s31, s3
    s_lshl_b32 s99, s31, 1
    v_and_b32 v{vXO}, 1, v{vL}
    v_lshlrev_b32 v{vXO}, 10, v{vXO}
    v_bfe_u32 v{vt0}, v{vL}, 1, 1
    v_lshl_add_u32 v{vXO}, v{vt0}, 5, v{vXO}
    v_add_u32 v{vXO}, s99, v{vXO}
    global_load_dword v{vXV}, v{vXO}, s[4:5]
    v_cmp_gt_u32 vcc, {2*NG}, v0
    s_mov_b64 s[100:101], vcc
    s_mov_b32 s{sSPIN}, 0
    s_waitcnt vmcnt(0)
    L_W_fin:
    buffer_load_dwordx4 {vr(G0,4)}, v{vFA}, {WS}, s96 offen sc1
    """)
    for k in range(4): a(f"v_mov_b32 v{G1+k}, s{sTAU+k}")
    if glu:
        a(f"""
        s_mov_b64 exec, s[100:101]
        s_cbranch_execz L_W_nog
        buffer_load_dwordx4 {vr(G1,4)}, v{vFA}, {WS}, s98 offen sc1
        L_W_nog:
        s_mov_b64 exec, -1
        """)
    a(f"v_mov_b32 v{vBAD}, 0\n s_add_u32 s{sSPIN}, s{sSPIN}, 1\n s_waitcnt vmcnt(0)")
    for k in range(8): a(f"v_bitop3_b32 v{vBAD}, v{vBAD}, v{G0+k}, s{sTAU+(k&3)} bitop3:0xf6")
    a(f"""
    v_and_b32 v{vBAD}, 0xff, v{vBAD}
    v_cmp_ne_u32 vcc, 0, v{vBAD}
    s_cmp_lt_u32 s{sSPIN}, {SPIN*4}
    s_cbranch_scc0 L_W_fok
    s_cbranch_vccnz L_W_fin
    L_W_fok:
    """)
    stamp(8)
    for k in range(8): a(f"v_and_b32 v{G0+k}, v{vM24}, v{G0+k}")
    for k in range(4): a(f"v_permlane16_swap_b32 v{G0+k}, v{G1+k}")
    for k in range(4): a(f"v_add_f32 v{G0+k}, v{G0+k}, v{G1+k}")
    for k in range(2): a(f"v_permlane32_swap_b32 v{G0+k}, v{G0+2+k}")
    for k in range(2): a(f"v_add_f32 v{G0+k}, v{G0+k}, v{G0+2+k}")
    for sh in (8, 4, 2):
        for k in range(2): a(f"v_add_f32_dpp v{G0+k}, v{G0+k}, v{G0+k} row_ror:{sh} row_mask:0xf bank_mask:0xf")
    a(f"""
    v_and_b32 v{vt0}, 1, v{vG}
    v_lshlrev_b32 v{vt0}, 7, v{vt0}
    v_lshrrev_b32 v{vt1}, 5, v{vL}
    v_lshl_add_u32 v{vt0}, v{vt1}, 6, v{vt0}
    v_and_b32 v{vt1}, 1, v{vL}
    v_lshl_add_u32 v{vt0}, v{vt1}, 4, v{vt0}
    s_lshl_b32 s31, s{sW}, 2
    s_add_u32 s31, s31, {RD}
    v_add_u32 v{vt0}, s31, v{vt0}
    s_mov_b32 exec_lo, 0x00030003
    s_mov_b32 exec_hi, 0x00030003
    ds_write2_b32 v{vt0}, v{G0}, v{G0+1} offset0:0 offset1:8
    s_mov_b64 exec, -1
    s_waitcnt lgkmcnt(0)
    s_barrier
    s_cmp_lg_u32 s{sW}, 0
    s_cbranch_scc1 L_fin
    v_and_b32 v{vt0}, 3, v{vL}
    v_lshlrev_b32 v{vt0}, 5, v{vt0}
    v_add_u32 v{vt0}, {RD}, v{vt0}
    ds_read_b128 {vr(OHC,4)}, v{vt0}
    ds_read_b128 {vr(OHC+4,4)}, v{vt0} offset:16
    ds_read_b128 {vr(OHC+8,4)}, v{vt0} offset:128
    ds_read_b128 {vr(OHC+12,4)}, v{vt0} offset:144
    v_lshlrev_b32 v{G0}, 16, v{vXV}
    v_and_b32 v{G0+1}, 0xffff0000, v{vXV}
    s_waitcnt lgkmcnt(0)
    """)
    for k in range(4): a(f"v_add_f32 v{OHC+4*k}, v{OHC+4*k}, v{OHC+4*k+1}\n v_add_f32 v{OHC+4*k+2}, v{OHC+4*k+2}, v{OHC+4*k+3}")
    for k in range(4): a(f"v_add_f32 v{OHC+4*k}, v{OHC+4*k}, v{OHC+4*k+2}")
    a(f"""
    v_cvt_pk_bf16_f32 v{G1}, v{OHC}, v{OHC+4}
    v_cvt_pk_bf16_f32 v{G1+1}, v{OHC+8}, v{OHC+12}
    v_lshlrev_b32 v{G0+2}, 16, v{G1}
    v_and_b32 v{G0+3}, 0xffff0000, v{G1}
    v_add_f32 v{G0}, v{G0}, v{G0+2}
    v_add_f32 v{G0+1}, v{G0+1}, v{G0+3}
    v_cvt_pk_bf16_f32 v{G1}, v{G0}, v{G0+1}
    v_lshlrev_b32 v{G0+2}, 16, v{G1+1}
    v_and_b32 v{G0+3}, 0xffff0000, v{G1+1}
    v_lshlrev_b32 v{G0}, 16, v{G1}
    v_and_b32 v{G0+1}, 0xffff0000, v{G1}
    v_add_f32 v{G0}, v{G0}, v{G0+2}
    v_add_f32 v{G0+1}, v{G0+1}, v{G0+3}
    v_cvt_pk_bf16_f32 v{G1}, v{G0}, v{G0+1}
    s_mov_b64 exec, 15
    global_store_dword v{vXO}, v{G1}, s[24:25]
    s_cmp_lg_u32 s{sIDX}, 0
    s_cbranch_scc1 L_fin
    s_mov_b64 exec, 1
    s_add_u32 s31, s{sGEN}, 1
    v_mov_b32 v{G0}, s31
    buffer_store_dword v{G0}, v{vZ}, {WS}, 0 offen sc1
    L_fin:
    """)
    if diag:
        a("s_mov_b64 exec, -1")
        stamp(9)
        a(f"""
        s_waitcnt lgkmcnt(0)
        s_cmp_lg_u32 s{sW}, 0
        s_cbranch_scc1 L_end
        s_lshl_b32 s31, s2, 8
        s_add_u32 s31, s31, {STAMP}
        s_add_u32 s28, s28, s31
        s_addc_u32 s29, s29, 0
        v_mov_b32 v5, 0
        """)
        for j in range(10): a(f"v_mov_b32 v6, s{64+2*j}\n v_mov_b32 v7, s{65+2*j}\n global_store_dwordx2 v5, v[6:7], s[28:29] offset:{8*j}\n s_nop 1")
        a(f"v_mov_b32 v6, s{sSPIN}\n v_mov_b32 v7, 0\n global_store_dwordx2 v5, v[6:7], s[28:29] offset:80")
    a("L_end:\n s_endpgm")
    a.end_kernel(kn, vgpr=512, accum=256)
    a.lines, added = hazard.fix(a.lines)
    return a.text()

if __name__ == "__main__":
    open("k1.s", "w").write(gen(diag=False))
    open("k1d.s", "w").write(gen(diag=True))
```

```python
import sys, math
from asmlib import *
import hazard

WS_GEN = 0
WS_QG  = 4096
WS_ST  = WS_QG + 65536
OGS    = 32768 + 256
WS_OG  = 1 << 20
FPS    = 32768 + 128
WS_FP  = 8 << 20
WS_USED = 16 << 20
STAMP  = 200 * 1024 * 1024
SCALE  = (128 ** -0.5) * math.log2(math.e)
SPIN   = 4000

def f2u(x):
    import struct
    return struct.unpack("<I", struct.pack("<f", x))[0]

class RA:
    def __init__(s, start, end): s.p = start; s.end = end
    def __call__(s, n=1, al=1):
        if n > 1 and al == 1: al = 2
        s.p = (s.p + al - 1) // al * al
        r = s.p; s.p += n
        assert s.p <= s.end, "out of registers"
        return r

def key32(i):
    return ((i & 3) << 2) | (((i >> 2) & 1) << 1) | ((i >> 3) & 1)

def gen(diag=False, glu=True, dbg=False):
    a = Asm(); kn = NAME + "_kernel"
    a.launch(kn, 256, 256, 163840, single=True)
    a.begin_kernel(kn)
    sW, sIDX, sH, sJ, sB = 30, 52, 53, 54, 55
    sGEN, sW32, sSPIN = 56, 57, 62
    sTAU = 58
    WS, R1, R2, R3, R4 = "s[32:35]", "s[36:39]", "s[40:43]", "s[44:47]", "s[48:51]"
    def stamp(i):
        if diag: a(f"s_memrealtime s[{64+2*i}:{65+2*i}]")
    def srd(base, ptr, size):
        a(f"s_mov_b32 s{base}, s{ptr}\n s_mov_b32 s{base+1}, s{ptr+1}\n s_mov_b32 s{base+2}, {size}\n s_mov_b32 s{base+3}, 0x20000")
    def allsum(regs, tmp):
        for sh in (8, 4, 2, 1):
            for r in regs: a(f"v_add_f32_dpp v{r}, v{r}, v{r} row_ror:{sh} row_mask:0xf bank_mask:0xf")
        for sw in ("v_permlane16_swap_b32", "v_permlane32_swap_b32"):
            for r, t in zip(regs, tmp): a(f"v_mov_b32 v{t}, v{r}")
            for r, t in zip(regs, tmp): a(f"{sw} v{r}, v{t}")
            for r, t in zip(regs, tmp): a(f"v_add_f32 v{r}, v{r}, v{t}")
    def allmax(r, t):
        for sh in (8, 4, 2, 1):
            a(f"v_max_f32_dpp v{r}, v{r}, v{r} row_ror:{sh} row_mask:0xf bank_mask:0xf")
        for sw in ("v_permlane16_swap_b32", "v_permlane32_swap_b32"):
            a(f"v_mov_b32 v{t}, v{r}\n {sw} v{r}, v{t}\n v_max_f32 v{r}, v{r}, v{t}")
    def lsb_tags(dst, pos, t0, t1):
        a(f"""
        v_mul_u32_u24 v{t0}, 37, v{pos}
        v_add_u32 v{t0}, s{sGEN}, v{t0}
        v_and_b32 v{t1}, 3, v{t0}
        v_lshlrev_b32 v{t1}, v{t1}, 1
        v_bfe_i32 v{dst}, v{t0}, 2, 1
        v_and_b32 v{dst}, 15, v{dst}
        v_xor_b32 v{t1}, v{t1}, v{dst}
        v_bfe_u32 v{t0}, v{t0}, 3, 4
        v_lshl_or_b32 v{t0}, v{t0}, 16, v{t1}
        s_mov_b32 s31, 0x10001
        """)
        for i in range(4):
            a(f"v_lshrrev_b32 v{dst+i}, {i}, v{t0}\n v_and_b32 v{dst+i}, s31, v{dst+i}")
    def layernorm(x, f, t, outp):
        for b in range(2):
            for k in range(4):
                a(f"v_lshlrev_b32 v{f+8*b+2*k}, 16, v{x+4*b+k}\n v_and_b32 v{f+8*b+2*k+1}, 0xffff0000, v{x+4*b+k}")
        for b in range(2):
            a(f"v_add_f32 v{t+b}, v{f+8*b}, v{f+8*b+1}")
        for k in range(2, 8):
            for b in range(2): a(f"v_add_f32 v{t+b}, v{t+b}, v{f+8*b+k}")
        allsum([t, t+1], [t+2, t+3])
        for b in range(2): a(f"v_mul_f32 v{t+b}, {hex(f2u(1/512))}, v{t+b}")
        for b in range(2):
            a(f"v_sub_f32 v{t+4}, v{f+8*b}, v{t+b}\n v_mul_f32 v{t+2+b}, v{t+4}, v{t+4}")
            for k in range(1, 8):
                a(f"v_sub_f32 v{t+4}, v{f+8*b+k}, v{t+b}\n v_fmac_f32 v{t+2+b}, v{t+4}, v{t+4}")
        allsum([t+2, t+3], [t+4, t+5])
        for b in range(2): a(f"v_mul_f32 v{t+2+b}, {hex(f2u(1/512))}, v{t+2+b}")
        a(f"v_cvt_pk_bf16_f32 v{t+4}, v{t}, v{t+1}\n v_cvt_pk_bf16_f32 v{t+5}, v{t+2}, v{t+3}")
        a(f"v_lshlrev_b32 v{t}, 16, v{t+4}\n v_and_b32 v{t+1}, 0xffff0000, v{t+4}")
        a(f"v_lshlrev_b32 v{t+2}, 16, v{t+5}\n v_and_b32 v{t+3}, 0xffff0000, v{t+5}")
        for b in range(2): a(f"v_add_f32 v{t+2+b}, {hex(f2u(1e-5))}, v{t+2+b}")
        a(f"v_cvt_pk_bf16_f32 v{t+5}, v{t+2}, v{t+3}\n v_lshlrev_b32 v{t+2}, 16, v{t+5}\n v_and_b32 v{t+3}, 0xffff0000, v{t+5}")
        for b in range(2): a(f"v_sqrt_f32 v{t+2+b}, v{t+2+b}")
        a(f"v_cvt_pk_bf16_f32 v{t+5}, v{t+2}, v{t+3}\n v_lshlrev_b32 v{t+2}, 16, v{t+5}\n v_and_b32 v{t+3}, 0xffff0000, v{t+5}")
        for b in range(2): a(f"v_rcp_f32 v{t+4+b}, v{t+2+b}")
        for b in range(2):
            for k in range(8): a(f"v_sub_f32 v{f+8*b+k}, v{f+8*b+k}, v{t+b}")
            for k in range(4):
                a(f"v_cvt_pk_bf16_f32 v{t+6}, v{f+8*b+2*k}, v{f+8*b+2*k+1}")
                a(f"v_lshlrev_b32 v{f+8*b+2*k}, 16, v{t+6}\n v_and_b32 v{f+8*b+2*k+1}, 0xffff0000, v{t+6}")
            for k in range(8):
                r = f+8*b+k
                a(f"v_mul_f32 v{t+6}, v{r}, v{t+4+b}\n v_fma_f32 v{t+7}, -v{t+6}, v{t+2+b}, v{r}\n v_fma_f32 v{r}, v{t+7}, v{t+4+b}, v{t+6}")
            for k in range(4):
                a(f"v_cvt_pk_bf16_f32 v{outp+4*b+k}, v{f+8*b+2*k}, v{f+8*b+2*k+1}")
    def gen_derive(vg):
        a(f"""
        v_readfirstlane_b32 s{sGEN}, v{vg}
        s_mul_i32 s{sW32}, s{sGEN}, 0x9E3779B1
        s_add_u32 s{sW32}, s{sW32}, 0x7F4A7C15
        s_mul_i32 s31, s{sGEN}, 167
        """)
        for i, c in enumerate((0x00, 0x55, 0xA3, 0x3C)):
            a(f"s_add_u32 s{sTAU+i}, s31, {c}\n s_and_b32 s{sTAU+i}, s{sTAU+i}, 0xff")

    stamp(0)
    a(f"""
    s_cmp_ge_u32 s2, 256
    s_cbranch_scc1 L_end
    s_load_dwordx16 s[4:19], s[0:1], 0
    s_load_dwordx8 s[20:27], s[0:1], 64
    s_load_dwordx2 s[28:29], s[0:1], 96
    v_lshrrev_b32 v2, 6, v0
    v_and_b32 v1, 63, v0
    v_readfirstlane_b32 s{sW}, v2
    s_and_b32 s31, s2, 7
    s_lshr_b32 s3, s2, 4
    s_lshl_b32 s31, s31, 4
    s_add_u32 s{sIDX}, s31, s3
    v_and_b32 v2, 15, v1
    v_lshrrev_b32 v3, 4, v1
    v_lshlrev_b32 v4, 4, v1
    v_mov_b32 v5, 0
    s_bitcmp1_b32 s2, 3
    s_waitcnt lgkmcnt(0)
    s_mov_b32 s32, s28
    s_mov_b32 s33, s29
    s_mov_b32 s34, {WS_USED}
    s_mov_b32 s35, 0x20000
    s_cbranch_scc1 L_W
    """)
    vL, vN, vG, vL16, vZ = 1, 2, 3, 4, 5
    QB = 131072
    ra = RA(6, 256)
    srd(36, 6, 0x1000000)
    vt0, vt1 = ra(), ra()
    vGen = ra()
    a(f"""
    buffer_load_dword v{vGen}, v{vZ}, {WS}, 0 offen sc1
    s_lshr_b32 s{sB}, s{sIDX}, 6
    s_lshl_b32 s96, s{sIDX}, 17
    s_lshl_b32 s97, s{sW}, 15
    s_add_u32 s96, s96, s97
    """)
    for i in range(32):
        t = vt0 if i % 2 == 0 else vt1
        a(f"v_xor_b32 v{t}, {key32(i) << 4}, v{vL16}\n s_add_u32 m0, s97, {i*1024}\n s_add_u32 s3, s96, {i*1024}\n buffer_load_dwordx4 v{t}, {R1}, s3 offen nt lds")
    stamp(1)
    vA = ra(8); vQ = ra(8); vT = ra(16); vQD = ra(); vCK = ra(); vTQ = ra(4); vTO = ra(4); vMSK = ra(); vMX = ra(); vPW = ra(); vOA = ra(); vH = ra()
    a(f"""
    v_and_b32 v{vH}, 31, v{vL}
    v_and_b32 v{vt0}, 3, v{vL}
    v_lshlrev_b32 v{vt0}, 2, v{vt0}
    v_bfe_u32 v{vt1}, v{vL}, 2, 1
    v_lshl_or_b32 v{vt0}, v{vt1}, 1, v{vt0}
    v_bfe_u32 v{vt1}, v{vL}, 3, 1
    v_or_b32 v{vt0}, v{vt0}, v{vt1}
    v_lshrrev_b32 v{vt1}, 5, v{vL}
    v_xor_b32 v{vt0}, v{vt0}, v{vt1}
    v_lshlrev_b32 v{vt0}, 4, v{vt0}
    v_lshlrev_b32 v{vA}, 10, v{vH}
    v_add_u32 v{vA}, s97, v{vA}
    v_lshlrev_b32 v{vQ}, 8, v{vH}
    v_add_u32 v{vQ}, {QB}, v{vQ}
    """)
    for s in range(7, -1, -1):
        a(f"v_xor_b32 v{vt1}, {s << 5}, v{vt0}\n v_add_u32 v{vA+s}, v{vA}, v{vt1}\n v_add_u32 v{vQ+s}, v{vQ}, v{vt1}")
    a(f"""
    v_lshrrev_b32 v{vt1}, 5, v{vL}
    v_lshlrev_b32 v{vMX}, 5, v{vH}
    v_lshl_add_u32 v{vt1}, v{vt1}, 2, v{vMX}
    v_add_u32 v{vMX}, {QB}, v{vMX}
    s_lshl_b32 s31, s{sW}, 3
    s_add_u32 s31, s31, {QB}
    v_add_u32 v{vCK}, s31, v{vt1}
    """)
    vMXW = vCK; vCK = ra()
    a(f"""
    v_bfe_u32 v{vt0}, v{vL}, 4, 1
    v_lshlrev_b32 v{vt0}, 10, v{vt0}
    v_lshrrev_b32 v{vt1}, 5, v{vL}
    v_lshl_or_b32 v{vt0}, v{vt1}, 8, v{vt0}
    v_lshl_or_b32 v{vt0}, v{vN}, 4, v{vt0}
    s_lshl_b32 s31, s{sW}, 11
    s_add_u32 s31, s31, {QB + 8192}
    v_add_u32 v{vPW}, s31, v{vt0}
    """)
    a(f"""
    v_lshrrev_b32 v{vt0}, 5, v{vL}
    v_lshlrev_b32 v{vt0}, 4, v{vt0}
    v_bfe_u32 v{vt1}, v{vL}, 4, 1
    v_lshl_or_b32 v{vt0}, v{vt1}, 2, v{vt0}
    v_bfe_u32 v{vT+1}, v{vL}, 2, 2
    v_or_b32 v{vt0}, v{vt0}, v{vT+1}
    v_lshlrev_b32 v{vt0}, 10, v{vt0}
    v_and_b32 v{vT+2}, 1, v{vL}
    v_lshl_or_b32 v{vt0}, v{vT+2}, 3, v{vt0}
    s_lshl_b32 s31, s{sW}, 8
    v_add_u32 v{vt0}, s31, v{vt0}
    v_lshlrev_b32 v{vT+1}, 2, v{vT+1}
    v_lshl_or_b32 v{vT+1}, v{vt1}, 1, v{vT+1}
    v_bfe_u32 v{vT+2}, v{vL}, 1, 1
    v_xor_b32 v{vt1}, v{vT+1}, v{vT+2}
    v_lshlrev_b32 v{vt1}, 4, v{vt1}
    """)
    for x in range(16):
        a(f"v_xor_b32 v{vT+x}, {x << 4}, v{vt1}\n v_add_u32 v{vT+x}, v{vT+x}, v{vt0}")
        if x & 1: a(f"v_add_u32 v{vT+x}, 8192, v{vT+x}")
    a(f"""
    v_lshlrev_b32 v{vt0}, 2, v{vG}
    v_xor_b32 v{vt0}, v{vt0}, v{vN}
    v_lshlrev_b32 v{vt0}, 4, v{vt0}
    v_lshl_or_b32 v{vQD}, v{vG}, 8, v{vt0}
    s_lshl_b32 s98, s{sW}, 13
    s_add_u32 s98, s98, {QB}
    v_add_u32 v{vCK}, s98, v{vL16}
    s_mov_b32 s31, {16*OGS}
    v_mul_lo_u32 v{vOA}, v{vG}, s31
    v_lshl_add_u32 v{vOA}, v{vN}, 4, v{vOA}
    v_mov_b32 v{vMSK}, 0xfffefffe
    s_lshl_b32 s99, s{sB}, 15
    s_lshl_b32 s31, s{sW}, 13
    s_add_u32 s99, s99, s31
    s_add_u32 s99, s99, {WS_QG}
    s_waitcnt vmcnt(32)
    """)
    gen_derive(vGen)
    lsb_tags(vTQ, vG, vt0, vt1)
    a(f"v_add_u32 v{vGen}, 11, v{vN}")
    lsb_tags(vTO, vGen, vt0, vt1)
    a(f"s_mov_b32 s{sSPIN}, 0\n s_waitcnt vmcnt(4)")
    stamp(2)
    a("L_A_gather:")
    for i in range(8):
        t = vt0 if i % 2 == 0 else vt1
        kk = ((i & 1) << 1) | ((i >> 1) & 1)
        a(f"v_xor_b32 v{t}, {kk << 4}, v{vQD}\n s_add_u32 m0, s98, {i*1024}\n s_add_u32 s3, s99, {i*1024}\n buffer_load_dwordx4 v{t}, {WS}, s3 offen sc1 lds")
    a("s_waitcnt vmcnt(0)\n s_barrier")
    stamp(3)
    D = 3
    NB = D + 1
    fA = ra(4*NB, 4); fB = ra(4*NB, 4); fC = ra(8, 4); S = ra(16, 4); vBAD = ra()
    a(f"v_mov_b32 v{vBAD}, 0")
    q = []
    def rd_step(s):
        cb, sp = s >> 3, s & 7
        a(f"ds_read_b128 {vr(fA+4*(s%NB),4)}, v{vA+sp} offset:{cb*256}"); q.append(("A", s))
        a(f"ds_read_b128 {vr(fB+4*(s%NB),4)}, v{vQ+sp} offset:{cb*8192}"); q.append(("B", s))
    def wait_for(tag):
        if tag in q:
            k = q.index(tag); n = len(q) - 1 - k
            a(f"s_waitcnt lgkmcnt({n})"); del q[:k+1]
    for s in range(D): rd_step(s)
    chk_issue = {3*i: i for i in range(8)}
    chk_use = {3*i + 2: i for i in range(8)}
    for s in range(32):
        if s in chk_issue:
            i = chk_issue[s]
            a(f"ds_read_b128 {vr(fC+4*(i&1),4)}, v{vCK} offset:{i*1024}"); q.append(("C", i))
        if s + D < 32: rd_step(s + D)
        wait_for(("B", s))
        a(f"v_mfma_f32_32x32x16_bf16 {vr(S,16)}, {vr(fA+4*(s%NB),4)}, {vr(fB+4*(s%NB),4)}, {vr(S,16) if s else 0}")
        if s in chk_use:
            i = chk_use[s]
            wait_for(("C", i))
            for k in range(4): a(f"v_bitop3_b32 v{vBAD}, v{vBAD}, v{fC+4*(i&1)+k}, v{vTQ+k} bitop3:0xf6")
        if s == 24: a("s_barrier")
    vM = ra(); vm8 = ra(8, 4)
    a(f"v_and_b32 v{vBAD}, 0x10001, v{vBAD}\n v_cmp_ne_u32 vcc, 0, v{vBAD}\n v_mov_b32 v{vt1}, 0x7f800000")
    a(f"v_max3_f32 v{vM}, v{S}, v{S+1}, v{S+2}")
    for k in range(3, 15, 2): a(f"v_max3_f32 v{vM}, v{vM}, v{S+k}, v{S+k+1}")
    a(f"v_max_f32 v{vM}, v{vM}, v{S+15}\n v_cndmask_b32 v{vM}, v{vM}, v{vt1}, vcc")
    a(f"""
    ds_write_b32 v{vMXW}, v{vM}
    s_waitcnt lgkmcnt(0)
    s_barrier
    ds_read_b128 {vr(vm8,4)}, v{vMX}
    ds_read_b128 {vr(vm8+4,4)}, v{vMX} offset:16
    s_waitcnt lgkmcnt(1)
    v_max3_f32 v{vM}, v{vm8}, v{vm8+1}, v{vm8+2}
    v_max_f32 v{vM}, v{vM}, v{vm8+3}
    s_waitcnt lgkmcnt(0)
    v_max3_f32 v{vM}, v{vM}, v{vm8+4}, v{vm8+5}
    v_max3_f32 v{vM}, v{vM}, v{vm8+6}, v{vm8+7}
    v_cmp_eq_u32 vcc, v{vM}, v{vt1}
    s_add_u32 s{sSPIN}, s{sSPIN}, 1
    s_cbranch_vccz L_A_ok
    s_cmp_lt_u32 s{sSPIN}, {SPIN}
    s_cbranch_scc0 L_A_ok
    s_barrier
    s_branch L_A_gather
    L_A_ok:
    """)
    stamp(4)
    def tr(ws, u, jh):
        base = (ws*8 + u)*4 + 2*jh
        a(f"ds_read_b64_tr_b16 {ar(base,2)}, v{vT+2*u+jh} offset:{(ws&1)*32768}"); q.append(("T", ws, u, jh))
    trl = [(ws, u, jh) for ws in range(4) for u in range(8) for jh in range(2)]
    NPRE = 12
    for x in trl[:NPRE]: tr(*x)
    vLs = ra(); P = ra(8, 4)
    for k in range(16): a(f"v_sub_f32 v{S+k}, v{S+k}, v{vM}")
    for k in range(16): a(f"v_exp_f32 v{S+k}, v{S+k}")
    for k in range(8): a(f"v_cvt_pk_bf16_f32 v{P+k}, v{S+2*k}, v{S+2*k+1}")
    a(f"ds_write_b128 v{vPW}, {vr(P,4)}\n ds_write_b128 v{vPW}, {vr(P+4,4)} offset:512")
    for k in range(8): a(f"v_add_f32 v{S+k}, v{S+k}, v{S+k+8}")
    for k in range(4): a(f"v_add_f32 v{S+k}, v{S+k}, v{S+k+4}")
    a(f"v_add_f32 v{S}, v{S}, v{S+2}\n v_add_f32 v{S+1}, v{S+1}, v{S+3}\n v_add_f32 v{vLs}, v{S}, v{S+1}")
    a(f"ds_write_b32 v{vMXW}, v{vLs} offset:1024\n s_waitcnt lgkmcnt(0)\n s_barrier")
    q.clear()
    PF = ra(32, 4); O = ra(64, 4); E = ra(16, 4); vPR = ra()
    a(f"v_add_u32 v{vPR}, {QB+8192}, v{vL16}")
    def prd(ws, hh):
        a(f"ds_read_b128 {vr(PF+(hh*4+ws)*4,4)}, v{vPR} offset:{(ws*2+hh)*1024}"); q.append(("P", ws, hh))
    for ws in range(4): prd(ws, 0)
    a(f"s_cmp_lg_u32 s{sW}, 0\n s_cbranch_scc1 L_A_nostat")
    a(f"""
    ds_read_b128 {vr(vm8,4)}, v{vMX} offset:1024
    ds_read_b128 {vr(vm8+4,4)}, v{vMX} offset:1040
    v_lshlrev_b32 v{vt0}, 4, v{vH}
    s_lshl_b32 s3, s{sIDX}, 9
    s_add_u32 s3, s3, {WS_ST}
    v_mov_b32 v{E}, v{vM}
    v_mov_b32 v{E+2}, s{sW32}
    v_mov_b32 v{E+3}, s{sW32}
    s_waitcnt lgkmcnt(0)
    v_add_f32 v{vm8}, v{vm8}, v{vm8+1}
    v_add_f32 v{vm8+2}, v{vm8+2}, v{vm8+3}
    v_add_f32 v{vm8+4}, v{vm8+4}, v{vm8+5}
    v_add_f32 v{vm8+6}, v{vm8+6}, v{vm8+7}
    v_add_f32 v{vm8}, v{vm8}, v{vm8+2}
    v_add_f32 v{vm8+4}, v{vm8+4}, v{vm8+6}
    v_add_f32 v{E+1}, v{vm8}, v{vm8+4}
    s_mov_b32 exec_hi, 0
    buffer_store_dwordx4 {vr(E,4)}, v{vt0}, {WS}, s3 offen sc1
    s_mov_b64 exec, -1
    L_A_nostat:
    """)
    stamp(5)
    nxt = NPRE
    AH = 6
    moved = False
    for ws in range(4):
        for u in range(8):
            need_idx = (ws*8 + u)*2 + 1
            while nxt < 64 and nxt <= need_idx + AH:
                if trl[nxt][0] == 2 and not moved:
                    for x in range(16): a(f"v_add_u32 v{vT+x}, 0x10000, v{vT+x}")
                    moved = True
                tr(*trl[nxt]); nxt += 1
            if ws == 3 and u in (2, 3, 4, 5): prd(u - 2, 1)
            wait_for(("P", ws, 0)); wait_for(("T", ws, u, 1))
            a(f"v_mfma_f32_16x16x32_bf16 {vr(O+4*u,4)}, {vr(PF+4*ws,4)}, {ar((ws*8+u)*4,4)}, {vr(O+4*u,4) if ws else 0}")
    a(f"""
    s_lshl_b32 s96, s{sIDX}, 8
    s_mul_i32 s31, s{sW}, {OGS}
    s_add_u32 s96, s96, s31
    s_add_u32 s96, s96, {WS_OG}
    """)
    def epi(hh):
        ops = []
        for r in range(4):
            for d in range(4):
                ops.append(f"v_cvt_pk_bf16_f32 v{E+4*r+d}, v{O+32*hh+8*d+r}, v{O+32*hh+8*d+4+r}")
                ops.append(f"v_and_or_b32 v{E+4*r+d}, v{E+4*r+d}, v{vMSK}, v{vTO+d}")
            ops.append(f"s_add_u32 s3, s96, {(16*hh + r)*4*OGS}\n buffer_store_dwordx4 {vr(E+4*r,4)}, v{vOA}, {WS}, s3 offen sc1")
        return ops
    e0 = epi(0)
    k = 0
    for ws in range(4):
        for u in range(8):
            wait_for(("P", ws, 1))
            a(f"v_mfma_f32_16x16x32_bf16 {vr(O+32+4*u,4)}, {vr(PF+16+4*ws,4)}, {ar((ws*8+u)*4,4)}, {vr(O+32+4*u,4) if ws else 0}")
            if ws*8 + u >= 8:
                for _ in range(2):
                    if k < len(e0): a(e0[k]); k += 1
    while k < len(e0): a(e0[k]); k += 1
    for op in epi(1): a(op)
    stamp(6)
    if glu:
        a(f"s_cmp_ge_u32 s{sIDX}, 112\n s_cbranch_scc1 L_A_done")
        rg = RA(10, 200)
        X = rg(8, 4); F = rg(16, 4); T = rg(8, 4); XP = rg(8, 4); vD = rg(); vD2 = rg(); XA = rg(16, 4); BG = rg(32, 4); G = rg(8, 4); vR = rg(); vR2 = rg(); BD = rg(16, 4); HA = rg(2, 2); DD = rg(32, 4); EE = rg(16, 4); vM24 = rg()
        srd(40, 18, 512*1792*2); srd(44, 20, 512*1792*2); srd(48, 22, 512*1792*2)
        GB, UB, DB, XB, RB, HB = 0, 16384, 32768, 49152, 57344, 59392
        a(f"""
        s_barrier
        global_load_dwordx4 {vr(X,4)}, v{vL16}, s[4:5]
        global_load_dwordx4 {vr(X+4,4)}, v{vL16}, s[4:5] offset:1024
        v_lshrrev_b32 v{vD}, 1, v{vL}
        v_mul_u32_u24 v{vD}, 3584, v{vD}
        v_and_b32 v{vD2}, 1, v{vL}
        v_lshl_add_u32 v{vD}, v{vD2}, 4, v{vD}
        s_mul_i32 s96, s{sW}, {128*3584}
        s_lshl_b32 s31, s{sIDX}, 5
        s_add_u32 s96, s96, s31
        s_lshl_b32 s97, s{sW}, 12
        """)
        for i in range(4):
            for mat, (R, LB) in enumerate(((R2, GB), (R3, UB))):
                a(f"s_add_u32 m0, s97, {LB + i*1024}\n s_add_u32 s3, s96, {i*32*3584}\n buffer_load_dwordx4 v{vD}, {R}, s3 offen nt lds")
        a(f"""
        v_lshlrev_b32 v{vD2}, 2, v{vG}
        v_xor_b32 v{vD2}, v{vD2}, v{vN}
        v_lshlrev_b32 v{vD2}, 4, v{vD2}
        v_lshl_or_b32 v{vD2}, v{vG}, 10, v{vD2}
        s_lshl_b32 s96, s{sIDX}, 14
        s_lshl_b32 s31, s{sW}, 8
        s_add_u32 s96, s96, s31
        """)
        for i in range(4):
            a(f"v_xor_b32 v{vD}, {(i&1) << 5}, v{vD2}\n s_add_u32 m0, s97, {DB + i*1024}\n s_add_u32 s3, s96, {i*4096}\n buffer_load_dwordx4 v{vD}, {R4}, s3 offen nt lds")
        a("s_waitcnt vmcnt(12)")
        layernorm(X, F, T, XP)
        a(f"""
        s_lshl_b32 s31, s{sW}, 11
        s_add_u32 s31, s31, {XB}
        v_add_u32 v{vD}, s31, v{vL16}
        ds_write_b128 v{vD}, {vr(XP,4)}
        ds_write_b128 v{vD}, {vr(XP+4,4)} offset:1024
        v_and_b32 v{vD}, 1, v{vL}
        v_lshlrev_b32 v{vD}, 10, v{vD}
        v_lshl_add_u32 v{vD}, v{vG}, 4, v{vD}
        s_lshl_b32 s3, s{sW}, 8
        s_add_u32 s31, s31, s3
        v_add_u32 v{vD}, s31, v{vD}
        s_waitcnt lgkmcnt(0)
        """)
        for s in range(4): a(f"ds_read_b128 {vr(XA+4*s,4)}, v{vD} offset:{s*64}")
        a(f"""
        v_lshlrev_b32 v{vR}, 8, v{vG}
        v_lshl_add_u32 v{vR}, v{vN}, 3, v{vR}
        v_add_u32 v{vR}, s97, v{vR}
        s_waitcnt vmcnt(4)
        """)
        for mat, LB in enumerate((GB, UB)):
            for s in range(4):
                for jh in range(2):
                    a(f"ds_read_b64_tr_b16 {vr(BG+16*mat+4*s+2*jh,2)}, v{vR} offset:{LB + s*1024 + jh*128}")
            a("s_waitcnt lgkmcnt(0)")
            for s in range(4):
                a(f"v_mfma_f32_16x16x32_bf16 {vr(G+4*mat,4)}, {vr(XA+4*s,4)}, {vr(BG+16*mat+4*s,4)}, {vr(G+4*mat,4) if s else 0}")
        a(f"""
        v_lshlrev_b32 v{vR2}, 4, v{vN}
        s_lshl_b32 s31, s{sW}, 8
        s_add_u32 s31, s31, {RB}
        v_add_u32 v{vD}, s31, v{vR2}
        v_mov_b32 v{G+2}, v{G+4}
        v_mov_b32 v{G+3}, v{G+5}
        s_mov_b32 exec_lo, 0xffff
        s_mov_b32 exec_hi, 0
        ds_write_b128 v{vD}, {vr(G,4)}
        s_mov_b64 exec, -1
        s_waitcnt vmcnt(0) lgkmcnt(0)
        s_barrier
        """)
        for ww in range(4): a(f"ds_read_b128 {vr(F+4*ww,4)}, v{vR2} offset:{RB + ww*256}")
        a(f"""
        v_bfe_u32 v{vD}, v{vL}, 2, 2
        v_lshlrev_b32 v{vD2}, 2, v{vD}
        v_and_b32 v{vR}, 1, v{vG}
        v_lshl_or_b32 v{vD2}, v{vR}, 1, v{vD2}
        v_bfe_u32 v{vR}, v{vL}, 1, 1
        v_xor_b32 v{vD2}, v{vD2}, v{vR}
        v_lshlrev_b32 v{vD2}, 4, v{vD2}
        v_lshlrev_b32 v{vD}, 8, v{vD}
        v_lshl_or_b32 v{vD}, v{vG}, 10, v{vD}
        v_and_b32 v{vR}, 1, v{vL}
        v_lshl_or_b32 v{vD}, v{vR}, 3, v{vD}
        s_add_u32 s31, s97, {DB}
        v_add_u32 v{vD}, s31, v{vD}
        """)
        for u in range(8):
            a(f"v_xor_b32 v{vR}, {u << 5}, v{vD2}\n v_add_u32 v{vR}, v{vR}, v{vD}\n ds_read_b64_tr_b16 {vr(BD+2*u,2)}, v{vR}")
        a("s_waitcnt lgkmcnt(8)")
        for k in range(4): a(f"v_add_f32 v{F+k}, v{F+k}, v{F+4+k}\n v_add_f32 v{F+8+k}, v{F+8+k}, v{F+12+k}")
        for k in range(4): a(f"v_add_f32 v{F+k}, v{F+k}, v{F+8+k}")
        a(f"""
        v_cvt_pk_bf16_f32 v{F+4}, v{F}, v{F+1}
        v_cvt_pk_bf16_f32 v{F+5}, v{F+2}, v{F+3}
        v_lshlrev_b32 v{F}, 16, v{F+4}
        v_and_b32 v{F+1}, 0xffff0000, v{F+4}
        v_lshlrev_b32 v{F+2}, 16, v{F+5}
        v_and_b32 v{F+3}, 0xffff0000, v{F+5}
        v_mul_f32 v{F}, v{F}, v{F+2}
        v_mul_f32 v{F+1}, v{F+1}, v{F+3}
        v_cvt_pk_bf16_f32 v{F}, v{F}, v{F+1}
        s_lshl_b32 s31, s{sW}, 6
        s_add_u32 s31, s31, {HB}
        v_lshlrev_b32 v{vR}, 1, v{vN}
        v_add_u32 v{vR}, s31, v{vR}
        ds_write_b16 v{vR}, v{F}
        ds_write_b16_d16_hi v{vR}, v{F} offset:32
        v_and_b32 v{vR}, 1, v{vL}
        v_lshlrev_b32 v{vR}, 5, v{vR}
        v_lshl_add_u32 v{vR}, v{vG}, 3, v{vR}
        v_add_u32 v{vR}, s31, v{vR}
        s_waitcnt lgkmcnt(0)
        ds_read_b64 {vr(HA,2)}, v{vR}
        v_mov_b32 v{vM24}, 0xffffff00
        v_lshrrev_b32 v{vD}, 3, v{vN}
        v_mul_u32_u24 v{vD}, {FPS}, v{vD}
        v_and_b32 v{vD2}, 7, v{vN}
        v_lshl_add_u32 v{vD}, v{vD2}, 4, v{vD}
        s_mul_i32 s96, s{sW}, {8*FPS}
        s_lshl_b32 s31, s{sIDX}, 7
        s_add_u32 s96, s96, s31
        s_add_u32 s96, s96, {WS_FP + 128*128}
        s_waitcnt lgkmcnt(0)
        """)
        for u in range(8): a(f"v_mfma_f32_16x16x16_bf16 {vr(DD+4*u,4)}, {vr(HA,2)}, {vr(BD+2*u,2)}, 0")
        a("s_mov_b32 exec_lo, 0xffff\n s_mov_b32 exec_hi, 0")
        for k in range(4):
            for d in range(4): a(f"v_and_or_b32 v{EE+4*k+d}, v{DD+4*(2*k+(d>>1))+(d&1)}, v{vM24}, s{sTAU+d}")
            a(f"s_add_u32 s3, s96, {2*k*FPS}\n buffer_store_dwordx4 {vr(EE+4*k,4)}, v{vD}, {WS}, s3 offen sc1")
        a("s_mov_b64 exec, -1")
    a("L_A_done:")
    stamp(7)
    a("s_branch L_fin")

    a("L_W:")
    UK, WO, XN, QP, QO, WB, CC, CT, RD = 98304, 0, 131072, 139264, 144384, 144896, 145920, 148480, 149504
    ra = RA(6, 256)
    vt0, vt1, vGen = ra(), ra(), ra()
    MU = ra(4, 4); X = ra(8, 4); F = ra(16, 4); T = ra(8, 4); XP = ra(8, 4); XR = ra(16, 4); OH = ra(8, 4); ACC = ra(4, 4); vWQ = ra(); vUK = ra()
    srd(36, 8, 0x400000); srd(40, 10, 0x400000); srd(44, 12, 0x400000); srd(48, 14, 0x400000)
    a(f"""
    buffer_load_dword v{vGen}, v{vZ}, {WS}, 0 offen sc1
    global_load_dwordx4 {vr(X,4)}, v{vL16}, s[4:5]
    global_load_dwordx4 {vr(X+4,4)}, v{vL16}, s[4:5] offset:1024
    s_lshr_b32 s{sH}, s{sIDX}, 2
    s_and_b32 s{sJ}, s{sIDX}, 3
    s_lshl_b32 s96, s{sH}, 8
    s_lshl_b32 s31, s{sW}, 18
    s_add_u32 s31, s31, s96
    v_lshlrev_b32 v{vWQ}, 16, v{vG}
    v_lshl_add_u32 v{vWQ}, v{vN}, 4, v{vWQ}
    v_add_u32 v{vWQ}, s31, v{vWQ}
    s_lshl_b32 s97, s{sJ}, 20
    """)
    def wq_load(s):
        if s % 8 == 0 and s: a(f"s_add_u32 s97, s97, 0x100000\n s_and_b32 s97, s97, 0x3fffff")
        a(f"s_add_u32 s3, s97, {(s&7)*8192}\n buffer_load_dwordx4 {ar(4*s,4)}, v{vWQ}, {R1}, s3 offen nt")
    for s in range(8): wq_load(s)
    a(f"""
    v_xor_b32 v{vUK}, v{vN}, v{vG}
    v_lshlrev_b32 v{vUK}, 4, v{vUK}
    v_lshl_or_b32 v{vUK}, v{vG}, 13, v{vUK}
    s_lshl_b32 s98, s{sJ}, 20
    s_lshl_b32 s31, s{sW}, 18
    s_add_u32 s98, s98, s31
    s_add_u32 s98, s98, s96
    s_lshl_b32 s99, s{sW}, 13
    s_add_u32 s99, s99, {UK}
    """)
    for i in range(8):
        t = vt0 if i % 2 == 0 else vt1
        a(f"v_xor_b32 v{t}, {(i>>1) << 6}, v{vUK}\n s_add_u32 m0, s99, {i*1024}\n s_add_u32 s3, s98, {i*4*8192}\n buffer_load_dwordx4 v{t}, {R2}, s3 offen nt lds")
    for s in range(8, 32): wq_load(s)
    stamp(1)
    a("s_waitcnt vmcnt(40)")
    gen_derive(vGen)
    layernorm(X, F, T, XP)
    a(f"""
    s_lshl_b32 s31, s{sW}, 11
    s_add_u32 s31, s31, {XN}
    v_add_u32 v{vt0}, s31, v{vL16}
    ds_write_b128 v{vt0}, {vr(XP,4)}
    ds_write_b128 v{vt0}, {vr(XP+4,4)} offset:1024
    v_bfe_u32 v{vt0}, v{vL}, 3, 1
    v_lshlrev_b32 v{vt0}, 10, v{vt0}
    v_lshl_add_u32 v{vt0}, v{vG}, 4, v{vt0}
    s_lshl_b32 s3, s{sW}, 6
    s_add_u32 s31, s31, s3
    v_add_u32 v{vt0}, s31, v{vt0}
    s_waitcnt lgkmcnt(0)
    """)
    for t in range(4):
        a(f"s_add_u32 s3, s{sJ}, {t}\n s_and_b32 s3, s3, 3\n s_lshl_b32 s3, s3, 8\n v_add_u32 v{vt1}, s3, v{vt0}\n ds_read_b128 {vr(XR+4*t,4)}, v{vt1}")
    a(f"""
    v_and_b32 v{vt0}, 1, v{vL}
    v_lshlrev_b32 v{vt0}, 4, v{vt0}
    v_lshlrev_b32 v{vt0}, v{vt0}, 1
    v_bfe_u32 v{vt1}, v{vL}, 1, 2
    """)
    for r in range(4): a(f"v_cmp_eq_u32 vcc, {r}, v{vt1}\n v_cndmask_b32 v{MU+r}, 0, v{vt0}, vcc")
    def onehot(dst, src, half):
        for r in range(4):
            a(f"v_mul_u32_u24_sdwa v{dst+r}, v{src}, v{MU+r} dst_sel:DWORD dst_unused:UNUSED_PAD src0_sel:WORD_{half} src1_sel:DWORD")
    a("s_waitcnt lgkmcnt(0)")
    onehot(OH, XR, 0)
    for s in range(32):
        if s + 1 < 32: onehot(OH + 4*((s+1)&1), XR + ((s+1) >> 1), (s+1) & 1)
        a(f"s_waitcnt vmcnt({(7 - s) + 32 if s < 8 else 31 - s})")
        a(f"v_mfma_f32_16x16x32_bf16 {vr(ACC,4)}, {vr(OH+4*(s&1),4)}, {ar(4*s,4)}, {vr(ACC,4) if s else 0}")
    stamp(2)
    UA = ra(32, 4); QF = ra(16, 4); D2 = ra(8, 4); vTQ = ra(4, 4); vMSK = ra()
    a(f"""
    v_lshrrev_b32 v{vt0}, 2, v{vN}
    v_lshlrev_b32 v{vt0}, 3, v{vt0}
    v_and_or_b32 v{vt0}, v{vN}, 3, v{vt0}
    v_lshlrev_b32 v{vt0}, 8, v{vt0}
    v_add_u32 v{vt0}, s99, v{vt0}
    v_xor_b32 v{vt1}, v{vN}, v{vG}
    v_lshlrev_b32 v{vt1}, 4, v{vt1}
    """)
    for s in range(4):
        a(f"v_xor_b32 v{T}, {s << 6}, v{vt1}\n v_add_u32 v{T}, v{T}, v{vt0}")
        for u in range(2): a(f"ds_read_b128 {vr(UA+16*u+4*s,4)}, v{T} offset:{u*1024}")
    a(f"""
    v_lshrrev_b32 v{vt0}, 5, v{vL}
    s_lshl_b32 s31, s{sW}, 1
    v_add_u32 v{vt0}, s31, v{vt0}
    v_mul_u32_u24 v{vt0}, 272, v{vt0}
    v_lshl_add_u32 v{vt0}, v{vN}, 4, v{vt0}
    v_and_b32 v{vt1}, 1, v{vG}
    v_lshl_add_u32 v{vt0}, v{vt1}, 3, v{vt0}
    v_add_u32 v{vt0}, {QP}, v{vt0}
    v_cvt_pk_bf16_f32 v{T}, v{ACC}, v{ACC+1}
    v_cvt_pk_bf16_f32 v{T+1}, v{ACC+2}, v{ACC+3}
    ds_write_b64 v{vt0}, {vr(T,2)}
    """)
    for k in range(2):
        a(f"v_lshlrev_b32 v{T+2}, 16, v{T+k}\n v_and_b32 v{T+3}, 0xffff0000, v{T+k}\n v_sub_f32 v{T+2}, v{ACC+2*k}, v{T+2}\n v_sub_f32 v{T+3}, v{ACC+2*k+1}, v{T+3}\n v_cvt_pk_bf16_f32 v{T+4+k}, v{T+2}, v{T+3}")
    a(f"""
    ds_write_b64 v{vt0}, {vr(T+4,2)} offset:{8*272}
    v_mul_u32_u24 v{vt1}, 272, v{vN}
    v_lshl_add_u32 v{vt1}, v{vG}, 4, v{vt1}
    v_add_u32 v{vt1}, {QP}, v{vt1}
    s_waitcnt lgkmcnt(0)
    s_barrier
    """)
    for s in range(4): a(f"ds_read_b128 {vr(QF+4*s,4)}, v{vt1} offset:{s*64}")
    a(f"s_and_b32 s31, s{sH}, 3\n v_mov_b32 v{vGen}, s31")
    lsb_tags(vTQ, vGen, vt0, vt1)
    a(f"v_mov_b32 v{vMSK}, 0xfffefffe")
    for s in range(4):
        a(f"s_waitcnt lgkmcnt({3-s})")
        for u in range(2): a(f"v_mfma_f32_16x16x32_bf16 {vr(D2+4*u,4)}, {vr(UA+16*u+4*s,4)}, {vr(QF+4*s,4)}, {vr(D2+4*u,4) if s else 0}")
    a(f"""
    v_lshlrev_b32 v{vt0}, 8, v{vN}
    v_lshl_add_u32 v{vt0}, v{vG}, 4, v{vt0}
    s_lshl_b32 s31, s{sW}, 6
    s_add_u32 s31, s31, {QO}
    v_add_u32 v{vt0}, s31, v{vt0}
    s_mov_b32 s31, {hex(f2u(SCALE))}
    """)
    for sh in (8, 4, 2):
        for k in range(8): a(f"v_add_f32_dpp v{D2+k}, v{D2+k}, v{D2+k} row_ror:{sh} row_mask:0xf bank_mask:0xf")
    for k in range(8): a(f"v_mul_f32 v{D2+k}, s31, v{D2+k}")
    for k in range(4): a(f"v_cvt_pk_bf16_f32 v{T+k}, v{D2+2*k}, v{D2+2*k+1}\n v_and_or_b32 v{T+k}, v{T+k}, v{vMSK}, v{vTQ+k}")
    a(f"""
    s_mov_b32 exec_lo, 0x00030003
    s_mov_b32 exec_hi, 0x00030003
    ds_write_b128 v{vt0}, {vr(T,4)}
    s_mov_b64 exec, -1
    s_waitcnt lgkmcnt(0)
    s_barrier
    s_cmp_lg_u32 s{sW}, 0
    s_cbranch_scc1 L_W_nopub
    v_add_u32 v{vt0}, {QO}, v{vL16}
    ds_read_b128 {vr(T,4)}, v{vt0}
    v_and_b32 v{vt1}, 1, v{vG}
    v_lshlrev_b32 v{vt1}, 15, v{vt1}
    v_lshl_add_u32 v{vt1}, v{vN}, 4, v{vt1}
    s_lshl_b32 s3, s{sJ}, 13
    s_add_u32 s3, s3, s96
    s_add_u32 s3, s3, {WS_QG}
    s_mov_b32 exec_hi, 0
    s_waitcnt lgkmcnt(0)
    buffer_store_dwordx4 {vr(T,4)}, v{vt1}, {WS}, s3 offen sc1
    s_mov_b64 exec, -1
    L_W_nopub:
    """)
    stamp(3)
    ra = RA(MU + 4 + 48, 256)
    MU2 = MU
    vUV = ra(); vWO = ra(); vTU = ra(2, 2); vTW = ra(8, 4)
    a(f"""
    v_and_b32 v{vt0}, 1, v{vG}
    v_lshlrev_b32 v{vt0}, 1, v{vt0}
    v_xor_b32 v{vt0}, v{vt0}, v{vN}
    s_lshl_b32 s31, s{sW}, 3
    s_and_b32 s31, s31, 8
    v_xor_b32 v{vt0}, s31, v{vt0}
    v_lshlrev_b32 v{vt0}, 4, v{vt0}
    v_lshl_or_b32 v{vUV}, v{vG}, 13, v{vt0}
    """)
    for i in range(8):
        t = vt0 if i % 2 == 0 else vt1
        a(f"v_xor_b32 v{t}, {(i>>2) << 6}, v{vUV}\n s_add_u32 m0, s99, {i*1024}\n s_add_u32 s3, s98, {i*4*8192}\n buffer_load_dwordx4 v{t}, {R3}, s3 offen nt lds")
    a(f"""
    v_lshlrev_b32 v{vt0}, 2, v{vG}
    v_xor_b32 v{vt0}, v{vt0}, v{vN}
    v_lshlrev_b32 v{vt0}, 4, v{vt0}
    v_lshl_or_b32 v{vWO}, v{vG}, 10, v{vt0}
    s_lshl_b32 s31, s{sH}, 17
    s_lshl_b32 s3, s{sW}, 8
    s_add_u32 s31, s31, s3
    v_add_u32 v{vWO}, s31, v{vWO}
    s_lshl_b32 s97, s{sJ}, 15
    s_mul_i32 s100, s{sW}, 24576
    """)
    def wo_load(ii):
        t = vt0 if ii % 2 == 0 else vt1
        if ii % 8 == 0 and ii: a("s_add_u32 s97, s97, 0x8000\n s_and_b32 s97, s97, 0x1ffff")
        a(f"v_xor_b32 v{t}, {((ii>>1)&1) << 5}, v{vWO}\n s_add_u32 m0, s100, {WO + (ii % 24)*1024}\n s_add_u32 s3, s97, {(ii&7)*4096}\n buffer_load_dwordx4 v{t}, {R4}, s3 offen nt lds")
    for ii in range(24): wo_load(ii)
    a(f"""
    v_bfe_u32 v{vTW}, v{vL}, 2, 2
    v_and_b32 v{vTW+1}, 1, v{vG}
    v_lshlrev_b32 v{vt1}, 2, v{vTW}
    v_lshl_or_b32 v{vt1}, v{vTW+1}, 1, v{vt1}
    v_bfe_u32 v{vTW+1}, v{vL}, 1, 1
    v_xor_b32 v{vt1}, v{vt1}, v{vTW+1}
    v_and_b32 v{vTW+1}, 1, v{vL}
    v_lshlrev_b32 v{vTW+1}, 3, v{vTW+1}
    v_lshlrev_b32 v{vt0}, 4, v{vTW}
    v_add_u32 v{vt0}, v{vt0}, v{vG}
    v_lshl_or_b32 v{vt0}, v{vt0}, 8, v{vTW+1}
    v_add_u32 v{vt0}, {UK}, v{vt0}
    s_lshl_b32 s31, s{sW}, 2
    v_xor_b32 v{vTW+2}, s31, v{vt1}
    v_lshl_add_u32 v{vTU}, v{vTW+2}, 4, v{vt0}
    v_xor_b32 v{vTW+2}, 2, v{vTW+2}
    v_lshl_add_u32 v{vTU+1}, v{vTW+2}, 4, v{vt0}
    v_lshlrev_b32 v{vt0}, 11, v{vG}
    v_lshl_or_b32 v{vt0}, v{vTW}, 8, v{vt0}
    v_or_b32 v{vt0}, v{vt0}, v{vTW+1}
    v_add_u32 v{vt0}, s100, v{vt0}
    v_lshlrev_b32 v{vt1}, 4, v{vt1}
    """)
    for u in range(8): a(f"v_xor_b32 v{vTW+u}, {u << 5}, v{vt1}\n v_add_u32 v{vTW+u}, v{vTW+u}, v{vt0}")
    a("s_waitcnt vmcnt(24)\n s_barrier")
    for u in range(2):
        for Tk in range(4):
            for jh in range(2):
                a(f"ds_read_b64_tr_b16 {ar(128+(u*4+Tk)*4+2*jh,2)}, v{vTU+u} offset:{jh*16384 + Tk*1024}")
        a("s_waitcnt lgkmcnt(0)")
    def wo_tr(TT):
        for u in range(8):
            for jh in range(2):
                a(f"ds_read_b64_tr_b16 {ar((TT*8+u)*4+2*jh,2)}, v{vTW+u} offset:{WO + ((TT*8) % 24 + jh)*1024}")
            if u == 3: a("s_waitcnt lgkmcnt(0)")
        a("s_waitcnt lgkmcnt(0)")
    a("s_waitcnt vmcnt(16)"); wo_tr(0)
    for ii in range(24, 32): wo_load(ii)
    a("s_waitcnt vmcnt(16)"); wo_tr(1)
    a("s_waitcnt vmcnt(8)"); wo_tr(2)
    a("s_waitcnt vmcnt(0)"); wo_tr(3)
    stamp(4)
    SG = ra(4, 4); vSA = ra(); vOL = ra(); vTO = ra(4, 4); OP = ra(32, 4); OHC = ra(32, 4); WR = ra(4, 4); D1 = ra(4, 4); vBAD = ra(); e_ = ra(); t2 = ra(); M_ = ra()
    a(f"""
    s_lshr_b32 s{sB}, s{sW}, 1
    s_lshl_b32 s31, s{sB}, 15
    s_lshl_b32 s3, s{sH}, 4
    s_add_u32 s31, s31, s3
    s_add_u32 s31, s31, {WS_ST}
    v_lshlrev_b32 v{vSA}, 9, v{vL}
    v_add_u32 v{vSA}, s31, v{vSA}
    v_lshlrev_b32 v{vOL}, 11, v{vG}
    v_lshl_add_u32 v{vOL}, v{vN}, 4, v{vOL}
    s_mul_i32 s96, s{sIDX}, {OGS}
    s_lshl_b32 s31, s{sW}, 13
    s_add_u32 s96, s96, s31
    s_add_u32 s96, s96, {WS_OG}
    v_add_u32 v{vGen}, 11, v{vN}
    """)
    lsb_tags(vTO, vGen, vt0, vt1)
    a(f"""
    s_mov_b32 s{sSPIN}, 0
    L_W_poll:
    buffer_load_dwordx4 {vr(SG,4)}, v{vSA}, {WS}, 0 offen sc1
    s_add_u32 s{sSPIN}, s{sSPIN}, 1
    s_waitcnt vmcnt(0)
    v_cmp_ne_u32 vcc, s{sW32}, v{SG+2}
    s_cmp_lt_u32 s{sSPIN}, {SPIN*4}
    s_cbranch_scc0 L_W_got
    s_cbranch_vccnz L_W_poll
    L_W_got:
    s_mov_b32 s{sSPIN}, 0
    """)
    stamp(5)
    def o_loads():
        for s in range(8): a(f"s_add_u32 s3, s96, {s*256}\n buffer_load_dwordx4 {vr(OP+4*s,4)}, v{vOL}, {WS}, s3 offen sc1")
    o_loads()
    a(f"v_mov_b32 v{M_}, v{SG}")
    allmax(M_, t2)
    a(f"v_sub_f32 v{e_}, v{SG}, v{M_}\n v_exp_f32 v{e_}, v{e_}\n v_mul_f32 v{M_}, v{e_}, v{SG+1}")
    allsum([M_], [t2])
    a(f"""
    v_rcp_f32 v{M_}, v{M_}
    s_lshl_b32 s31, s{sW}, 8
    s_add_u32 s31, s31, {WB}
    v_lshl_add_u32 v{vt0}, v{vL}, 1, s31
    v_mul_f32 v{e_}, v{e_}, v{M_}
    v_cvt_pk_bf16_f32 v{t2}, v{e_}, v{e_}
    v_and_b32 v{M_}, 0xffff0000, v{t2}
    v_sub_f32 v{e_}, v{e_}, v{M_}
    v_cvt_pk_bf16_f32 v{e_}, v{e_}, v{e_}
    ds_write_b16 v{vt0}, v{t2}
    ds_write_b16 v{vt0}, v{e_} offset:128
    v_bfe_u32 v{vt0}, v{vL}, 3, 1
    v_lshlrev_b32 v{vt0}, 7, v{vt0}
    v_lshl_add_u32 v{vt0}, v{vG}, 4, v{vt0}
    s_and_b32 s3, s{sW}, 1
    s_lshl_b32 s3, s3, 6
    s_add_u32 s31, s31, s3
    v_add_u32 v{vt0}, s31, v{vt0}
    s_waitcnt lgkmcnt(0)
    ds_read_b128 {vr(WR,4)}, v{vt0}
    s_waitcnt lgkmcnt(0)
    """)
    for s in range(8): onehot(OHC + 4*s, WR + (s >> 1), s & 1)
    vCCW = ra(); vCCR = ra(); vCTW = ra(); vCTR = ra(4, 4); vFP = ra(); vM24 = ra()
    a(f"""
    v_lshrrev_b32 v{vt0}, 5, v{vL}
    v_lshlrev_b32 v{vt0}, 1, v{vt0}
    s_lshl_b32 s31, s{sB}, 2
    s_and_b32 s3, s{sW}, 1
    s_add_u32 s31, s31, s3
    v_add_u32 v{vt0}, s31, v{vt0}
    v_mul_u32_u24 v{vt0}, 272, v{vt0}
    v_lshl_add_u32 v{vt0}, v{vN}, 4, v{vt0}
    v_and_b32 v{vt1}, 1, v{vG}
    v_lshl_add_u32 v{vt0}, v{vt1}, 3, v{vt0}
    v_add_u32 v{vCCW}, {CC}, v{vt0}
    v_lshrrev_b32 v{vt0}, 3, v{vN}
    v_lshlrev_b32 v{vt0}, 2, v{vt0}
    v_and_or_b32 v{vt0}, v{vN}, 3, v{vt0}
    v_mul_u32_u24 v{vt0}, 272, v{vt0}
    v_lshl_add_u32 v{vt0}, v{vG}, 4, v{vt0}
    v_add_u32 v{vCCR}, {CC}, v{vt0}
    v_lshrrev_b32 v{vt0}, 5, v{vL}
    v_mul_u32_u24 v{vt0}, 272, v{vt0}
    v_lshl_add_u32 v{vt0}, v{vt1}, 5, v{vt0}
    v_lshl_add_u32 v{vt0}, v{vN}, 1, v{vt0}
    s_lshl_b32 s31, s{sW}, 6
    s_add_u32 s31, s31, {CT}
    v_add_u32 v{vCTW}, s31, v{vt0}
    v_and_b32 v{vt0}, 1, v{vL}
    v_mul_u32_u24 v{vt0}, 272, v{vt0}
    v_lshl_add_u32 v{vt0}, v{vG}, 4, v{vt0}
    """)
    for TT in range(4):
        a(f"s_add_u32 s3, s{sJ}, {TT}\n s_and_b32 s3, s3, 3\n s_lshl_b32 s3, s3, 6\n s_add_u32 s3, s3, {CT}\n v_add_u32 v{vCTR+TT}, s3, v{vt0}")
    a(f"""
    v_mov_b32 v{vM24}, 0xffffff00
    v_lshrrev_b32 v{vFP}, 3, v{vN}
    v_mul_u32_u24 v{vFP}, {FPS}, v{vFP}
    v_and_b32 v{vt0}, 7, v{vN}
    v_lshl_add_u32 v{vFP}, v{vt0}, 4, v{vFP}
    s_mul_i32 s97, s{sW}, {8*FPS}
    s_lshl_b32 s31, s{sIDX}, 7
    s_add_u32 s97, s97, s31
    s_add_u32 s97, s97, {WS_FP}
    L_W_comb:
    v_mov_b32 v{vBAD}, 0
    """)
    for s in range(8):
        a(f"s_waitcnt vmcnt({7-s})")
        a(f"v_mfma_f32_16x16x32_bf16 {vr(D1,4)}, {vr(OHC+4*s,4)}, {vr(OP+4*s,4)}, {vr(D1,4) if s else 0}")
        for k in range(4): a(f"v_bitop3_b32 v{vBAD}, v{vBAD}, v{OP+4*s+k}, v{vTO+k} bitop3:0xf6")
    a(f"""
    v_and_b32 v{vBAD}, 0x10001, v{vBAD}
    v_cmp_ne_u32 vcc, 0, v{vBAD}
    s_add_u32 s{sSPIN}, s{sSPIN}, 1
    s_cbranch_vccz L_W_cok
    s_cmp_lt_u32 s{sSPIN}, {SPIN}
    s_cbranch_scc0 L_W_cok
    """)
    o_loads()
    a("s_branch L_W_comb\n L_W_cok:")
    stamp(6)
    AF = ra(16, 4); D3 = ra(32, 4); EE = ra(16, 4)
    a(f"""
    v_cvt_pk_bf16_f32 v{WR}, v{D1}, v{D1+1}
    v_cvt_pk_bf16_f32 v{WR+1}, v{D1+2}, v{D1+3}
    ds_write_b64 v{vCCW}, {vr(WR,2)}
    s_waitcnt lgkmcnt(0)
    s_barrier
    """)
    for Tk in range(4): a(f"ds_read_b128 {vr(AF+4*Tk,4)}, v{vCCR} offset:{Tk*64}")
    for Tk in range(4):
        a(f"s_waitcnt lgkmcnt({3-Tk})")
        for u in range(2): a(f"v_mfma_f32_16x16x32_bf16 {vr(D3+4*u,4)}, {vr(AF+4*Tk,4)}, {ar(128+(u*4+Tk)*4,4)}, {vr(D3+4*u,4) if Tk else 0}")
    a(f"v_and_b32 v{vt1}, 1, v{vG}\n v_cmp_eq_u32 vcc, 1, v{vt1}")
    for u in range(2): a(f"v_add_f32 v{D3+4*u}, v{D3+4*u}, v{D3+4*u+1}\n v_add_f32 v{D3+4*u+2}, v{D3+4*u+2}, v{D3+4*u+3}")
    for u in range(2): a(f"v_add_f32 v{D3+4*u}, v{D3+4*u}, v{D3+4*u+2}")
    a(f"""
    v_cndmask_b32 v{vt0}, v{D3}, v{D3+4}, vcc
    v_cvt_pk_bf16_f32 v{vt0}, v{vt0}, v{vt0}
    ds_write_b16 v{vCTW}, v{vt0}
    s_waitcnt lgkmcnt(0)
    s_barrier
    """)
    for TT in range(4): a(f"ds_read_b128 {vr(AF+4*TT,4)}, v{vCTR+TT}")
    for k in range(4):
        for TT in range(4):
            if k == 0: a(f"s_waitcnt lgkmcnt({3-TT})")
            for u in (2*k, 2*k+1): a(f"v_mfma_f32_16x16x32_bf16 {vr(D3+4*u,4)}, {vr(AF+4*TT,4)}, {ar((TT*8+u)*4,4)}, {vr(D3+4*u,4) if TT else 0}")
    a("s_mov_b32 exec_lo, 0xffff\n s_mov_b32 exec_hi, 0")
    for k in range(4):
        for d in range(4): a(f"v_and_or_b32 v{EE+4*k+d}, v{D3+4*(2*k+(d>>1))+(d&1)}, v{vM24}, s{sTAU+d}")
        a(f"s_add_u32 s3, s97, {2*k*FPS}\n buffer_store_dwordx4 {vr(EE+4*k,4)}, v{vFP}, {WS}, s3 offen sc1")
    a("s_mov_b64 exec, -1")
    stamp(7)
    G0 = OP; G1 = OP + 4; vFA = ra(); vXO = ra(); vXV = ra()
    NG = 112 if glu else 0
    a(f"""
    v_lshrrev_b32 v{vFA}, 1, v0
    v_lshlrev_b32 v{vFA}, 7, v{vFA}
    v_and_b32 v{vt0}, 1, v0
    v_lshl_add_u32 v{vFA}, v{vt0}, 4, v{vFA}
    s_mul_i32 s96, s{sH}, {FPS}
    s_lshl_b32 s31, s{sJ}, 5
    s_add_u32 s96, s96, s31
    s_add_u32 s96, s96, {WS_FP}
    s_add_u32 s98, s96, {128*128}
    s_lshr_b32 s31, s{sH}, 1
    s_lshl_b32 s31, s31, 5
    s_and_b32 s3, s{sH}, 1
    s_lshl_b32 s3, s3, 3
    s_add_u32 s31, s31, s3
    s_lshl_b32 s3, s{sJ}, 1
    s_add_u32 s31, s31, s3
    s_lshl_b32 s99, s31, 1
    v_and_b32 v{vXO}, 1, v{vL}
    v_lshlrev_b32 v{vXO}, 10, v{vXO}
    v_bfe_u32 v{vt0}, v{vL}, 1, 1
    v_lshl_add_u32 v{vXO}, v{vt0}, 5, v{vXO}
    v_add_u32 v{vXO}, s99, v{vXO}
    global_load_dword v{vXV}, v{vXO}, s[4:5]
    v_cmp_gt_u32 vcc, {2*NG}, v0
    s_mov_b64 s[100:101], vcc
    s_mov_b32 s{sSPIN}, 0
    s_waitcnt vmcnt(0)
    L_W_fin:
    buffer_load_dwordx4 {vr(G0,4)}, v{vFA}, {WS}, s96 offen sc1
    """)
    for k in range(4): a(f"v_mov_b32 v{G1+k}, s{sTAU+k}")
    if glu:
        a(f"""
        s_mov_b64 exec, s[100:101]
        s_cbranch_execz L_W_nog
        buffer_load_dwordx4 {vr(G1,4)}, v{vFA}, {WS}, s98 offen sc1
        L_W_nog:
        s_mov_b64 exec, -1
        """)
    a(f"v_mov_b32 v{vBAD}, 0\n s_add_u32 s{sSPIN}, s{sSPIN}, 1\n s_waitcnt vmcnt(0)")
    for k in range(8): a(f"v_bitop3_b32 v{vBAD}, v{vBAD}, v{G0+k}, s{sTAU+(k&3)} bitop3:0xf6")
    a(f"""
    v_and_b32 v{vBAD}, 0xff, v{vBAD}
    v_cmp_ne_u32 vcc, 0, v{vBAD}
    s_cmp_lt_u32 s{sSPIN}, {SPIN*4}
    s_cbranch_scc0 L_W_fok
    s_cbranch_vccnz L_W_fin
    L_W_fok:
    """)
    stamp(8)
    for k in range(8): a(f"v_and_b32 v{G0+k}, v{vM24}, v{G0+k}")
    for k in range(4): a(f"v_permlane16_swap_b32 v{G0+k}, v{G1+k}")
    for k in range(4): a(f"v_add_f32 v{G0+k}, v{G0+k}, v{G1+k}")
    for k in range(2): a(f"v_permlane32_swap_b32 v{G0+k}, v{G0+2+k}")
    for k in range(2): a(f"v_add_f32 v{G0+k}, v{G0+k}, v{G0+2+k}")
    for sh in (8, 4, 2):
        for k in range(2): a(f"v_add_f32_dpp v{G0+k}, v{G0+k}, v{G0+k} row_ror:{sh} row_mask:0xf bank_mask:0xf")
    a(f"""
    v_and_b32 v{vt0}, 1, v{vG}
    v_lshlrev_b32 v{vt0}, 7, v{vt0}
    v_lshrrev_b32 v{vt1}, 5, v{vL}
    v_lshl_add_u32 v{vt0}, v{vt1}, 6, v{vt0}
    v_and_b32 v{vt1}, 1, v{vL}
    v_lshl_add_u32 v{vt0}, v{vt1}, 4, v{vt0}
    s_lshl_b32 s31, s{sW}, 2
    s_add_u32 s31, s31, {RD}
    v_add_u32 v{vt0}, s31, v{vt0}
    s_mov_b32 exec_lo, 0x00030003
    s_mov_b32 exec_hi, 0x00030003
    ds_write2_b32 v{vt0}, v{G0}, v{G0+1} offset0:0 offset1:8
    s_mov_b64 exec, -1
    s_waitcnt lgkmcnt(0)
    s_barrier
    s_cmp_lg_u32 s{sW}, 0
    s_cbranch_scc1 L_fin
    v_and_b32 v{vt0}, 3, v{vL}
    v_lshlrev_b32 v{vt0}, 5, v{vt0}
    v_add_u32 v{vt0}, {RD}, v{vt0}
    ds_read_b128 {vr(OHC,4)}, v{vt0}
    ds_read_b128 {vr(OHC+4,4)}, v{vt0} offset:16
    ds_read_b128 {vr(OHC+8,4)}, v{vt0} offset:128
    ds_read_b128 {vr(OHC+12,4)}, v{vt0} offset:144
    v_lshlrev_b32 v{G0}, 16, v{vXV}
    v_and_b32 v{G0+1}, 0xffff0000, v{vXV}
    s_waitcnt lgkmcnt(0)
    """)
    for k in range(4): a(f"v_add_f32 v{OHC+4*k}, v{OHC+4*k}, v{OHC+4*k+1}\n v_add_f32 v{OHC+4*k+2}, v{OHC+4*k+2}, v{OHC+4*k+3}")
    for k in range(4): a(f"v_add_f32 v{OHC+4*k}, v{OHC+4*k}, v{OHC+4*k+2}")
    a(f"""
    v_cvt_pk_bf16_f32 v{G1}, v{OHC}, v{OHC+4}
    v_cvt_pk_bf16_f32 v{G1+1}, v{OHC+8}, v{OHC+12}
    v_lshlrev_b32 v{G0+2}, 16, v{G1}
    v_and_b32 v{G0+3}, 0xffff0000, v{G1}
    v_add_f32 v{G0}, v{G0}, v{G0+2}
    v_add_f32 v{G0+1}, v{G0+1}, v{G0+3}
    v_cvt_pk_bf16_f32 v{G1}, v{G0}, v{G0+1}
    v_lshlrev_b32 v{G0+2}, 16, v{G1+1}
    v_and_b32 v{G0+3}, 0xffff0000, v{G1+1}
    v_lshlrev_b32 v{G0}, 16, v{G1}
    v_and_b32 v{G0+1}, 0xffff0000, v{G1}
    v_add_f32 v{G0}, v{G0}, v{G0+2}
    v_add_f32 v{G0+1}, v{G0+1}, v{G0+3}
    v_cvt_pk_bf16_f32 v{G1}, v{G0}, v{G0+1}
    s_mov_b64 exec, 15
    global_store_dword v{vXO}, v{G1}, s[24:25]
    s_cmp_lg_u32 s{sIDX}, 0
    s_cbranch_scc1 L_fin
    s_mov_b64 exec, 1
    s_add_u32 s31, s{sGEN}, 1
    v_mov_b32 v{G0}, s31
    buffer_store_dword v{G0}, v{vZ}, {WS}, 0 offen sc1
    L_fin:
    """)
    if dbg:
        a("s_mov_b64 exec, -1")
        stamp(9)
        a(f"""
        s_waitcnt lgkmcnt(0)
        s_cmp_lg_u32 s{sW}, 0
        s_cbranch_scc1 L_end
        s_and_b32 s31, s2, 0xf7
        s_cmp_lg_u32 s31, 0
        s_cbranch_scc1 L_end
        s_lshl_b32 s31, s2, 2
        v_mov_b32 v5, s31
        """)
        for k, j in enumerate((1, 2, 3, 4, 5, 6, 7, 9)): a(f"s_sub_u32 s31, s{64+2*j}, s64\n v_mov_b32 v6, s31\n global_store_dword v5, v6, s[26:27] offset:{4*k}")
    elif diag:
        a("s_mov_b64 exec, -1")
        stamp(9)
        a(f"""
        s_waitcnt lgkmcnt(0)
        s_cmp_lg_u32 s{sW}, 0
        s_cbranch_scc1 L_end
        s_lshl_b32 s31, s2, 8
        s_add_u32 s31, s31, {STAMP}
        s_add_u32 s28, s28, s31
        s_addc_u32 s29, s29, 0
        v_mov_b32 v5, 0
        """)
        for j in range(10): a(f"v_mov_b32 v6, s{64+2*j}\n v_mov_b32 v7, s{65+2*j}\n global_store_dwordx2 v5, v[6:7], s[28:29] offset:{8*j}\n s_nop 1")
        a(f"v_mov_b32 v6, s{sSPIN}\n v_mov_b32 v7, 0\n global_store_dwordx2 v5, v[6:7], s[28:29] offset:80")
    a("L_end:\n s_endpgm")
    a.end_kernel(kn, vgpr=512, accum=256)
    a.lines, added = hazard.fix(a.lines)
    return a.text()

if __name__ == "__main__":
    open("k1.s", "w").write(gen(diag=False))
    open("k1d.s", "w").write(gen(diag=True))
    open("k1g.s", "w").write(gen(diag=True, dbg=True))
```

```python
import re
TRANS = ("v_exp_f32", "v_log_f32", "v_rcp_f32", "v_rsq_f32", "v_sqrt_f32", "v_sin_f32", "v_cos_f32")
def regs_of(tok):
    tok = tok.strip()
    tok = tok.lstrip("-")
    m = re.fullmatch(r"abs\((.*)\)", tok)
    if m: tok = m.group(1)
    tok = tok.strip("|")
    m = re.fullmatch(r"([vas])(\d+)", tok)
    if m: return [(m.group(1), int(m.group(2)))]
    m = re.fullmatch(r"([vas])\[(\d+):(\d+)\]", tok)
    if m: return [(m.group(1), i) for i in range(int(m.group(2)), int(m.group(3)) + 1)]
    if tok == "vcc": return [("s", "vcc")]
    if tok == "exec": return [("s", "exec")]
    if tok == "m0": return [("s", "m0")]
    return []
class I:
    def __init__(s, line):
        s.line = line
        t = line.split(";")[0].strip()
        s.is_label = t.endswith(":")
        s.is_dir = t.startswith(".")
        s.op = t.split()[0] if t else ""
        rest = t[len(s.op):].strip()
        ops = [o.strip() for o in rest.split(",")] if rest else []
        mods = ""
        if ops:
            parts = ops[-1].split()
        m = re.search(r"\s(quad_perm|row_shr|row_shl|row_ror|row_bcast|row_mirror|row_half_mirror|wave_shr|wave_shl|row_newbcast)", " " + rest)
        s.dpp = bool(m) or s.op.endswith("_dpp")
        rest2 = re.sub(r"\b(quad_perm|op_sel|op_sel_hi|neg_lo|neg_hi):\[[^\]]*\]", "", rest)
        ops = [o.strip() for o in rest2.split(",")] if rest2 else []
        ops = [o.split()[0] if o.split() else "" for o in ops]
        s.ops = ops
        s.lds = bool(re.search(r"\blds\b", rest2)) or s.op.startswith("global_load_lds")
        op = s.op
        s.mfma = op.startswith("v_mfma") or op.startswith("v_smfmac")
        s.valu = op.startswith("v_") and not s.mfma
        s.salu = op.startswith("s_")
        s.ds = op.startswith("ds_")
        s.vmem = op.startswith("buffer_") or op.startswith("global_")
        s.trans = any(op.startswith(x) for x in TRANS)
        s.w = []; s.r = []; s.C = []; s.store_data = []
        R = [regs_of(o) for o in ops]
        if op.startswith("v_smfmac"):
            s.w = R[0]; s.AB = R[1] + R[2] + R[3]; s.C = R[0]; s.r = s.AB + s.C
            s.passes = 4
        elif s.mfma:
            s.w = R[0]; s.AB = R[1] + R[2]; s.C = R[3]; s.r = s.AB + s.C
            s.passes = 8 if "32x32x16" in op or "32x32x8" in op else 4
        elif s.valu:
            if op.startswith("v_cmp"):
                s.w = R[0]; s.r = sum(R[1:], [])
            elif op.startswith("v_permlane") and "swap" in op:
                s.w = R[0] + R[1]; s.r = R[0] + R[1]
            elif op.startswith("v_add_co") or op.startswith("v_addc_co") or op.startswith("v_sub_co"):
                s.w = R[0] + R[1]; s.r = sum(R[2:], [])
            elif op == "v_nop":
                pass
            else:
                s.w = R[0]; s.r = sum(R[1:], [])
                if op.startswith("v_fmac") or op.startswith("v_dot2c") or s.dpp or op.startswith("v_writelane"): s.r = s.r + R[0]
                if op.startswith("v_cndmask") and len(ops) == 3: s.r = s.r + [("s", "vcc")]
        elif s.ds:
            if op.startswith("ds_read") or op.startswith("ds_bpermute") or op.startswith("ds_swizzle") or op.startswith("ds_permute"):
                s.w = R[0]; s.r = sum(R[1:], [])
            else:
                s.r = sum(R, [])
        elif s.vmem:
            if "load" in op and not s.lds:
                s.w = R[0]; s.r = sum(R[1:], [])
            elif op.startswith("buffer_store"):
                s.r = sum(R, []); s.store_data = R[0] if ("x4" in op or "x3" in op) else []
            elif op.startswith("global_store"):
                s.r = sum(R, []); s.store_data = R[1] if ("x4" in op or "x3" in op) else []
            else:
                s.r = sum(R, [])
            if s.lds: s.r = s.r + [("s", "m0")]
        elif s.salu:
            if op.startswith("s_cmp") or op.startswith("s_waitcnt") or op.startswith("s_cbranch") or op in ("s_barrier", "s_nop", "s_branch", "s_endpgm", "s_sleep", "s_setprio") or op.startswith("s_bitcmp"):
                s.r = sum(R, [])
            else:
                s.w = R[0] if R else []; s.r = sum(R[1:], [])
        s.states = 1
        if op == "s_nop": s.states = int(ops[0], 0) + 1
        if s.is_label or s.is_dir or not op: s.states = 0
def need(p, c):
    n = 0
    pw = set(p.w);
    if p.mfma:
        tab = {4: (8, 6, 3), 8: (12, 10, 7)}[p.passes]
        if c.mfma:
            if pw & set(c.AB): n = max(n, tab[0])
            if pw & set(c.C) and not (p.w == c.C and p.passes == c.passes): n = max(n, tab[1])
            if pw & set(c.w) and not (pw & set(c.C)): n = max(n, tab[1])
        elif c.valu or c.ds or c.vmem:
            if pw & (set(c.r) | set(c.w)): n = max(n, tab[0])
        if c.valu and set(p.C) & set(c.w): n = max(n, tab[2])
    if p.valu:
        pv = {x for x in pw if x[0] in "va"}; ps = {x for x in pw if x[0] == "s"}
        if c.mfma and pv & set(c.r): n = max(n, 2)
        if c.valu and c.dpp and pv & set(c.r): n = max(n, 2)
        if c.valu and c.op.startswith("v_permlane") and pv & set(c.r): n = max(n, 2)
        if c.valu and (c.op.startswith("v_readlane") or c.op.startswith("v_readfirstlane")) and pv & set(c.r): n = max(n, 1)
        if p.trans and (c.valu or c.ds or c.vmem) and pv & set(c.r): n = max(n, 1)
        if ps and c.valu and ps & set(c.r): n = max(n, 4 if c.op.startswith(("v_readlane", "v_writelane")) else 2)
        if ps and c.vmem and ps & set(c.r): n = max(n, 5)
    if p.salu and ("s", "m0") in pw and c.lds: n = max(n, 1)
    if p.store_data and set(p.store_data) & set(c.w): n = max(n, 2)
    return n
def fix(lines, verbose=False):
    out = []; hist = []
    added = 0
    for line in lines:
        c = I(line)
        if c.states == 0:
            out.append(line); continue
        dist = 0; req = 0
        for p in reversed(hist):
            if dist >= 20: break
            k = need(p, c)
            if k > dist: req = max(req, k - dist)
            dist += p.states
        if req > 0:
            while req > 0:
                k = min(req, 16)
                nl = f"    s_nop {k-1}"
                out.append(nl); hist.append(I(nl)); added += k; req -= k
                if verbose: print("hazard pad", k, "before", line.strip())
        out.append(line); hist.append(c)
        if c.op in ("s_branch", "s_endpgm"): hist = []
        if len(hist) > 40: hist = hist[-30:]
    return out, added
```

```python
import sys, math, struct
from asmlib import *
import hazard

WS_QG  = 4096
WS_ST  = WS_QG + 65536
WS_GO  = WS_ST + 65536
WS_HN  = WS_GO + 16384
WS_CK  = WS_HN + 16384
WS_GU  = WS_GO + 65536
OGS    = 32768 + 256
WS_OG  = 1 << 19
FPS    = 32768 + 128
WS_FP  = WS_OG + 128 * OGS
WS_USED = 6 << 20
assert WS_FP + 32 * FPS <= WS_USED and WS_GU + 16 * 16384 <= WS_OG
TOUCH = (WS_OG + 50 * OGS + 32768, WS_OG + 120 * OGS + 32768)
assert TOUCH[0] >> 21 == 1 and TOUCH[1] >> 21 == 2
STAMP  = 200 * 1024 * 1024
SCALE  = (128 ** -0.5) * math.log2(math.e)
SPIN   = 30000
GLUB   = 512 * 1792 * 2

def f2u(x): return struct.unpack("<I", struct.pack("<f", x))[0]

class RA:
    def __init__(s, start, end): s.p = start; s.end = end
    def __call__(s, n=1, al=1):
        if n > 1 and al == 1: al = 2
        s.p = (s.p + al - 1) // al * al
        r = s.p; s.p += n
        assert s.p <= s.end, "out of registers"
        return r
class SA:
    def __init__(s, free): s.free = list(free)
    def __call__(s): return s.free.pop(0)
    def pair(s):
        for r in s.free:
            if r % 2 == 0 and r + 1 in s.free:
                s.free.remove(r); s.free.remove(r + 1); return r
        raise AssertionError("no pair")
class VQ:
    def __init__(s, a): s.a = a; s.q = []
    def add(s, tag): s.q.append(tag)
    def wait(s, tag):
        if tag in s.q:
            k = len(s.q) - 1 - s.q[::-1].index(tag); n = len(s.q) - 1 - k
            assert n <= 63
            s.a(f"s_waitcnt vmcnt({n})"); del s.q[:k+1]

def key32(i): return ((i & 3) << 2) | (((i >> 2) & 1) << 1) | ((i >> 3) & 1)

def gen(diag=False, dbg=False, fine=None, only=None, nodump=False,
        pref=True, late=True,
        await0=True, first=2, mid=2, TH=0, hint=False, HS=17, PV=4, qbar=True, NT=64, goat='c', HW=1, gat='s', dat='e', gudrain=True, genA='early', genW=8, NL=0, NV=5, try1=False, GI=32, lateL=True, GV=None, sorder='a', tlb=False, pf3=False, pfpol='', pf0pol='', pv2=False, NE=8, RT=9, pf1all=True, n1max=48, touch=False, gearly=False, wck=False, ckf=False, spread=False, outpol='', ckdrain=True, sm=2, FV=0, fin2=True, glu2=True, s1='e', ukpre=True, ukpos=24, fmask=True, stail=2, fakeXq=False, fakeXo=False, xpol='', c0=0, slg=0, slp=0, onewave=False, xlate=0, fbar=False, pwF=False, pwA='', q2=0, apre=False, SD=3, WI=0, WJ=0, cpre=0, cprepol='', clast=None, omaj='c', alt=False, epo=False, otouch=False, genearly=True, g0=1, gs=3,
        w0=3, nln=10, lnstart=12, lnstep=13, qstep=1, prepoll=True, oat=2,
        cpol='nt', qpol='', ukpol='', uvpol='nt', wopol='', glupol='nt', qown=None, uka=None, woown=None):
    qown = qpol if qown is None else qown; uka = ukpol if uka is None else uka; woown = wopol if woown is None else woown
    a = Asm(); kn = NAME + "_kernel"
    a.launch(kn, 256, 256, 163840, single=True)
    a.begin_kernel(kn)
    sW, sIDX, sH, sJ, sB, sGEN, sW32, sTAU, sSPIN, sPERM = 30, 52, 53, 54, 55, 56, 57, 58, 62, 63
    pX, pC, pWQ, pUK, pUV, pWO, pG, pU, pD, pOUT, pDBG, pWS = 4, 6, 8, 10, 12, 14, 18, 20, 22, 24, 26, 28
    WS, R1, R2, R3, R4 = "s[32:35]", "s[36:39]", "s[40:43]", "s[44:47]", "s[48:51]"
    vL, vN, vG, vL16, vZ, vt0, vt1, vGen, vPF = 1, 2, 3, 4, 5, 6, 7, 8, 9
    def fs(name):
        if fine and name in fine:
            k = fine.index(name); a(f"s_memtime s[{64+2*k}:{65+2*k}]")
    def stamp(i):
        if fine:
            if i == 0:
                for k in range(64, 88): a(f"s_mov_b32 s{k}, 0")
            fs(f"c{i}")
        elif diag and (only is None or i in only): a(f"s_memrealtime s[{64+2*i}:{65+2*i}]")
    def srd(base, ptr, size):
        a(f"s_mov_b32 s{base}, s{ptr}\n s_mov_b32 s{base+1}, s{ptr+1}\n s_mov_b32 s{base+2}, {size}\n s_mov_b32 s{base+3}, 0x20000")
    def red(op, r, t, full=True):
        for sh in (8, 4, 2, 1): a(f"{op}_dpp v{r}, v{r}, v{r} row_ror:{sh} row_mask:0xf bank_mask:0xf")
        for sw in ("v_permlane16_swap_b32", "v_permlane32_swap_b32")[:2 if full else 1]:
            a(f"v_mov_b32 v{t}, v{r}\n {sw} v{r}, v{t}\n {op} v{r}, v{r}, v{t}")
    def lsb_tags(dst, flip):
        a(f"""
        v_add_u32 v{vt0}, 11, v{vN}
        v_mul_u32_u24 v{vt0}, 37, v{vt0}
        v_add_u32 v{vt0}, s{sGEN}, v{vt0}
        v_and_b32 v{vt1}, 3, v{vt0}
        v_lshlrev_b32 v{vt1}, v{vt1}, 1
        v_bfe_i32 v{dst}, v{vt0}, 2, 1
        v_and_b32 v{dst}, 15, v{dst}
        v_xor_b32 v{vt1}, v{vt1}, v{dst}
        v_bfe_u32 v{vt0}, v{vt0}, 3, 4
        v_lshl_or_b32 v{vt0}, v{vt0}, 16, v{vt1}
        """)
        if flip: a(f"v_not_b32 v{vt0}, v{vt0}")
        for i in range(4): a(f"v_lshrrev_b32 v{dst+i}, {i}, v{vt0}\n v_and_b32 v{dst+i}, 0x10001, v{dst+i}")
    def capture(fn, *args):
        keep = a.lines; a.lines = []
        fn(*args)
        out = a.lines; a.lines = keep
        return out
    def layernorm(x, f, t):
        for k in range(8): a(f"v_lshlrev_b32 v{f+2*k}, 16, v{x+k}\n v_and_b32 v{f+2*k+1}, 0xffff0000, v{x+k}")
        a(f"v_pk_add_f32 {vr(t,2)}, {vr(f,2)}, {vr(f+2,2)}\n v_pk_add_f32 {vr(t+2,2)}, {vr(f+4,2)}, {vr(f+6,2)}")
        for k in (4, 6): a(f"v_pk_add_f32 {vr(t,2)}, {vr(t,2)}, {vr(f+2*k,2)}\n v_pk_add_f32 {vr(t+2,2)}, {vr(t+2,2)}, {vr(f+2*k+2,2)}")
        a(f"v_pk_add_f32 {vr(t,2)}, {vr(t,2)}, {vr(t+2,2)}\n v_add_f32 v{t}, v{t}, v{t+1}")
        red("v_add_f32", t, t+1, full=False)
        a(f"v_mul_f32 v{t}, {hex(f2u(-1/512))}, v{t}\n v_mov_b32 v{t+1}, v{t}")
        for k in range(8):
            a(f"v_pk_add_f32 {vr(t+2,2)}, {vr(f+2*k,2)}, {vr(t,2)}")
            if k == 0: a(f"v_pk_mul_f32 {vr(t+4,2)}, {vr(t+2,2)}, {vr(t+2,2)}")
            else: a(f"v_pk_fma_f32 {vr(t+4,2)}, {vr(t+2,2)}, {vr(t+2,2)}, {vr(t+4,2)}")
        a(f"v_add_f32 v{t+4}, v{t+4}, v{t+5}\n v_cvt_pk_bf16_f32 v{t}, v{t}, v{t}\n v_and_b32 v{t}, 0xffff0000, v{t}\n v_mov_b32 v{t+1}, v{t}")
        red("v_add_f32", t+4, t+5, full=False)
        a(f"""
        v_mul_f32 v{t+4}, {hex(f2u(1/512))}, v{t+4}
        v_cvt_pk_bf16_f32 v{t+4}, v{t+4}, v{t+4}
        v_and_b32 v{t+4}, 0xffff0000, v{t+4}
        v_add_f32 v{t+4}, {hex(f2u(1e-5))}, v{t+4}
        v_cvt_pk_bf16_f32 v{t+4}, v{t+4}, v{t+4}
        v_and_b32 v{t+4}, 0xffff0000, v{t+4}
        v_sqrt_f32 v{t+4}, v{t+4}
        """)
        for k in range(8): a(f"v_pk_add_f32 {vr(f+2*k,2)}, {vr(f+2*k,2)}, {vr(t,2)}")
        a(f"v_cvt_pk_bf16_f32 v{t+4}, v{t+4}, v{t+4}\n v_and_b32 v{t+4}, 0xffff0000, v{t+4}\n v_rcp_f32 v{t+4}, v{t+4}")
        for k in range(8): a(f"v_cvt_pk_bf16_f32 v{x+k}, v{f+2*k}, v{f+2*k+1}")
        a(f"v_mov_b32 v{t+5}, v{t+4}")
        for k in range(8): a(f"v_lshlrev_b32 v{f+2*k}, 16, v{x+k}\n v_and_b32 v{f+2*k+1}, 0xffff0000, v{x+k}")
        for k in range(8): a(f"v_pk_mul_f32 {vr(f+2*k,2)}, {vr(f+2*k,2)}, {vr(t+4,2)}")
        for k in range(8): a(f"v_cvt_pk_bf16_f32 v{x+k}, v{f+2*k}, v{f+2*k+1}")
    def gen_derive():
        a(f"v_readfirstlane_b32 s{sGEN}, v{vGen}")
        a(f"""
        s_mov_b32 s{sPERM}, 0x07060302
        s_mul_i32 s{sW32}, s{sGEN}, 0x9E3779B1
        s_add_u32 s{sW32}, s{sW32}, 0x7F4A7C15
        s_mul_i32 s31, s{sGEN}, 167
        """)
        for i, c in enumerate((0x00, 0x55, 0xA3, 0x3C)):
            a(f"s_add_u32 s{sTAU+i}, s31, {c}\n s_and_b32 s{sTAU+i}, s{sTAU+i}, 0xff")
    def multipliers(MU):
        a(f"v_and_b32 v{vt0}, 1, v{vL}\n v_lshlrev_b32 v{vt0}, 4, v{vt0}\n v_lshlrev_b32 v{vt0}, v{vt0}, 1\n v_bfe_u32 v{vt1}, v{vL}, 1, 2")
        for r in range(4): a(f"v_cmp_eq_u32 vcc, {r}, v{vt1}\n v_cndmask_b32 v{MU+r}, 0, v{vt0}, vcc")
    def onehot(dst, src, half, MU):
        for r in range(4):
            a(f"v_mul_u32_u24_sdwa v{dst+r}, v{src}, v{MU+r} dst_sel:DWORD dst_unused:UNUSED_PAD src0_sel:WORD_{half} src1_sel:DWORD")
    def fp_addr(vFP, vM24):
        a(f"""
        v_mov_b32 v{vM24}, 0xffffff00
        v_lshrrev_b32 v{vFP}, 3, v{vN}
        v_mul_u32_u24 v{vFP}, {FPS}, v{vFP}
        v_and_b32 v{vt0}, 7, v{vN}
        v_lshl_add_u32 v{vFP}, v{vt0}, 4, v{vFP}
        """)
    def fp_ops(k, D, EE, vFP, vM24, sbase):
        ops = [f"v_and_or_b32 v{EE+4*k+d}, v{D+4*(2*k+(d>>1))+(d&1)}, v{vM24}, s{sTAU+d}" for d in range(4)]
        ops.append(f"s_add_u32 s3, s{sbase}, {2*k*FPS}\n s_mov_b32 exec_lo, 0xffff\n s_mov_b32 exec_hi, 0\n buffer_store_dwordx4 {vr(EE+4*k,4)}, v{vFP}, {WS}, s3 offen sc1\n s_mov_b64 exec, -1")
        return ops
    def notice(data, soff):
        a(f"s_mov_b64 exec, 0xff\n buffer_store_dwordx4 {vr(data,4)}, v{vL16}, {WS}, s{soff} offen sc1\n s_mov_b64 exec, -1")
    def poll(lab, dst, vaddr, soff, word, nxt, width="dword", mult=1, nap=0):
        a(f"""
        {lab}:
        {f"s_sleep {nap}" if nap else ""}
        buffer_load_{width} {dst}, v{vaddr}, {WS}, {soff} offen sc1
        s_add_u32 s{sSPIN}, s{sSPIN}, 1
        s_waitcnt vmcnt(0)
        v_cmp_ne_u32 vcc, s{sW32}, v{word}
        s_cmp_lt_u32 s{sSPIN}, {SPIN*mult}
        s_cbranch_scc0 {nxt}
        s_cbranch_vccnz {lab}
        {nxt}:
        """)
    def code_pf(lab, frm, to):
        a(f"""
        s_getpc_b64 s[100:101]
        {lab}:
        v_lshrrev_b32 v{vt0}, 2, v0
        v_lshlrev_b32 v{vt0}, 7, v{vt0}
        v_min_u32 v{vt0}, {to}-{frm}, v{vt0}
        v_add_u32 v{vt0}, {frm}-{lab}, v{vt0}
        s_mov_b32 exec_lo, 0x11111111
        s_mov_b32 exec_hi, 0x11111111
        global_load_dword v{vPF}, v{vt0}, s[100:101] {pfpol}
        s_mov_b64 exec, -1
        """)
    KEYTAB = sum(key32(i) << (4*i) for i in range(16))

    stamp(0)
    a(f"""
    s_cmp_ge_u32 s2, 256
    s_cbranch_scc1 L_exit
    s_load_dwordx16 s[4:19], s[0:1], 0
    s_load_dwordx8 s[20:27], s[0:1], 64
    s_load_dwordx2 s[28:29], s[0:1], 96
    """)
    if pref == 'A': a(f"""
        s_bitcmp1_b32 s2, 3
        s_cbranch_scc1 L_nopf
        s_getpc_b64 s[100:101]
        L_pc:
        s_lshr_b32 s3, s2, 4
        s_lshl_b32 s3, s3, 11
        v_lshrrev_b32 v2, 4, v0
        v_lshl_add_u32 v2, v2, 7, s3
        v_min_u32 v2, L_end-L_pc, v2
        s_mov_b32 exec_lo, 0x00010001
        s_mov_b32 exec_hi, 0x00010001
        global_load_dword v{vPF}, v2, s[100:101] {pf0pol}
        s_mov_b64 exec, -1
        L_nopf:
        """)
    elif pref: a(f"""
        s_getpc_b64 s[100:101]
        L_pc:
        s_lshr_b32 s3, s2, 3
        s_lshl_b32 s3, s3, 10
        v_lshrrev_b32 v2, 5, v0
        v_lshl_add_u32 v2, v2, 7, s3
        v_min_u32 v2, L_end-L_pc, v2
        s_mov_b32 exec_lo, 1
        s_mov_b32 exec_hi, 1
        global_load_dword v{vPF}, v2, s[100:101] {pf0pol}
        s_mov_b64 exec, -1
        """)
    a(f"""
    v_lshrrev_b32 v2, 6, v0
    v_and_b32 v{vL}, 63, v0
    v_readfirstlane_b32 s{sW}, v2
    s_and_b32 s31, s2, 7
    s_lshr_b32 s3, s2, 4
    s_lshl_b32 s31, s31, 4
    s_add_u32 s{sIDX}, s31, s3
    v_and_b32 v{vN}, 15, v{vL}
    v_lshrrev_b32 v{vG}, 4, v{vL}
    v_mov_b32 v{vZ}, 0
    s_lshr_b32 s{sH}, s{sIDX}, 2
    s_and_b32 s{sJ}, s{sIDX}, 3
    s_lshl_b32 s96, s{sH}, 8
    s_lshl_b32 s31, s{sW}, 18
    s_add_u32 s31, s31, s96
    s_lshl_b32 s97, s{sJ}, 20
    s_add_u32 s98, s97, s31
    s_mov_b32 s34, {WS_USED}
    s_mov_b32 s35, 0x20000
    s_mov_b32 s39, 0x20000
    s_bitcmp1_b32 s2, 3
    s_cbranch_scc0 L_A
    """)
    sKB = sIDX
    if spread:
        sKB = 99
        pro_tail = a.lines[-2:]; del a.lines[-2:]
        a(f"s_and_b32 s3, s2, 7\n s_lshr_b32 s{sKB}, s2, 4\n s_lshl_b32 s{sKB}, s{sKB}, 3\n s_add_u32 s{sKB}, s{sKB}, s3")
        a.lines += pro_tail
    sH8, sROW = 96, 98
    pro = a.lines; a.lines = []

    a("L_A:")
    QB = 131072
    MXB, PB, DB, HB = QB, QB + 8192, QB + 16384, QB + 4096
    sa = SA([16, 17, 8, 9, 12, 13, 14, 15, 24, 25, 88, 89, 90, 91, 92, 93, 94, 95, 96, 97])
    sKT = sa.pair(); sM1 = sa.pair(); sM2 = sa.pair(); sM3 = sa.pair()
    sKI, sCL, sCS, sQS, sQL, sHN, sCK, sGO, sGS, sOS, sST, sW8 = [sa() for _ in range(12)]
    sOS2x = 55 if False else 23
    ra = RA(10, 128)
    XA, FA_, TA_, MUA, NTC = 160, 168, 184, 192, 196
    a(f"""
    v_lshrrev_b32 v{vt0}, 5, v{vL}
    v_and_b32 v{vt1}, 31, v{vL}
    v_lshlrev_b32 v{vt0}, 10, v{vt0}
    v_lshl_add_u32 v{vt0}, v{vt1}, 4, v{vt0}
    s_bfe_u32 s31, s{sIDX}, 0x10002
    s_lshl_b32 s31, s31, 9
    s_and_b32 s3, s{sW}, 1
    s_lshl_b32 s3, s3, 3
    s_or_b32 s31, s31, s3
    v_xor_b32 v{vt0}, s31, v{vt0}
    v_xor_b32 v{vt1}, 8, v{vt0}
    v_xor_b32 v{XA+6}, 0x200, v{vt0}
    v_xor_b32 v{XA+7}, 0x208, v{vt0}
    s_mov_b32 s38, 0x1000000
    s_waitcnt lgkmcnt(0)
    s_mov_b32 s32, s{pWS}
    s_mov_b32 s33, s{pWS+1}
    {f"buffer_load_dword v{vGen}, v{vZ}, {WS}, 0 offen sc1" if genA == 'early' else ""}
    global_load_dwordx2 {vr(XA,2)}, v{vt0}, s[{pX}:{pX+1}]
    global_load_dwordx2 {vr(XA+2,2)}, v{vt1}, s[{pX}:{pX+1}]
    global_load_dwordx2 {vr(XA+4,2)}, v{XA+6}, s[{pX}:{pX+1}]
    global_load_dwordx2 {vr(XA+6,2)}, v{XA+7}, s[{pX}:{pX+1}]
    s_mov_b32 s36, s{pC}
    s_mov_b32 s37, s{pC+1}
    """)
    srd(40, pUK, 0x400000)
    a(f"""
    s_lshl_b32 s{sCL}, s{sW}, 15
    s_lshl_b32 s{sCS}, s{sKB}, 17
    s_add_u32 s{sCS}, s{sCS}, s{sCL}
    s_mov_b32 s{sKT}, {KEYTAB & 0xffffffff}
    s_mov_b32 s{sKT+1}, {KEYTAB >> 32}
    s_mov_b32 s{sKI}, 0x40000
    s_lshl_b32 s{sQL}, s{sW}, 13
    s_add_u32 s{sQL}, s{sQL}, {QB}
    s_mov_b32 m0, s{sQL}
    v_lshlrev_b32 v{vt1}, 13, v{vG}
    v_lshl_add_u32 v{vt1}, v{vN}, 4, v{vt1}
    v_lshlrev_b32 v{vL16}, 4, v{vL}
    s_mov_b32 s3, 0
    """)
    fs("aK")
    def cloop(lab, upto, th, cpol=cpol):
        a(f"""
        {lab}:
        s_bfe_u64 s[100:101], s[{sKT}:{sKT+1}], s{sKI}
        s_add_u32 s{sKI}, s{sKI}, 4
        v_xor_b32 v{vt0}, s100, v{vL}
        v_lshlrev_b32 v{vt0}, 4, v{vt0}
        {f"s_waitcnt vmcnt({th-1})" if th else ""}
        buffer_load_dwordx4 v{vt0}, {R1}, s{sCS} offen {cpol} lds
        s_addk_i32 m0, 0x400
        s_addk_i32 s{sCS}, 0x400
        s_cmp_lt_u32 s{sKI}, {0x40000 + 4*upto}
        s_cbranch_scc1 {lab}
        """)
    if c0:
        a(f"s_mov_b32 m0, s{sCL}")
        cloop("L_A_c0", c0, 0)
        a(f"s_mov_b32 m0, s{sQL}")
    if await0: a(f"s_waitcnt vmcnt({c0})")
    if not ukpre: a(f"s_mov_b32 m0, s{sCL}")
    else: a(f"""
    L_A_u:
    buffer_load_dwordx4 v{vt1}, {R2}, s{sROW} offen {uka} lds
    s_addk_i32 m0, 0x400
    s_add_u32 s{sROW}, s{sROW}, 0x8000
    s_add_u32 s3, s3, 1
    s_cmp_lt_u32 s3, 8
    s_cbranch_scc1 L_A_u
    s_add_u32 m0, s{sCL}, {c0*1024}
    """)
    if first > c0: cloop("L_A_c1", first, 0)
    if genA == 'late': a(f"buffer_load_dword v{vGen}, v{vZ}, {WS}, 0 offen sc1")
    stamp(1)
    if not await0: a(f"s_waitcnt vmcnt({8*int(ukpre) + first + int(genA == 'late')})")
    layernorm(XA, FA_, TA_)
    multipliers(MUA)
    OHG = ra(16, 4); vGL = ra()
    a(f"""
    s_and_b32 s31, s{sIDX}, 3
    s_lshl_b32 s31, s31, 3
    s_lshr_b32 s3, s{sW}, 1
    s_add_u32 s31, s31, s3
    v_lshl_add_u32 v{vt0}, v{vG}, 1, s31
    v_bfe_u32 v{vt1}, v{vL}, 3, 1
    v_lshl_add_u32 v{vt0}, v{vt1}, 5, v{vt0}
    v_lshlrev_b32 v{vt0}, 2, v{vt0}
    ds_bpermute_b32 v{TA_}, v{vt0}, v{XA}
    ds_bpermute_b32 v{TA_+1}, v{vt0}, v{XA+1}
    v_mul_u32_u24 v{vGL}, {16*3584}, v{vG}
    v_lshl_add_u32 v{vGL}, v{vN}, 4, v{vGL}
    s_and_b32 s31, s{sIDX}, 7
    s_lshl_b32 s31, s31, 4
    s_add_u32 s31, s31, s{sW}
    s_mul_i32 s{sGS}, s31, {4*3584}
    s_lshr_b32 s31, s{sIDX}, 3
    s_lshl_b32 s31, s31, 8
    s_add_u32 s{sGS}, s{sGS}, s31
    s_cmp_lt_u32 s{sIDX}, 112
    s_cselect_b32 s31, {GLUB}, 0
    """)
    srd(40, pG, "s31"); srd(44, pU, "s31"); srd(48, pD, "s31")
    a("s_waitcnt lgkmcnt(0)")
    for s in range(4): onehot(OHG + 4*s, TA_ + (s >> 1), s & 1, MUA)
    fs("aLN")
    n2 = min(32, first + mid)
    if mid: cloop("L_A_c2", n2, 0)
    vA = ra(8); vQ = ra(8); vT = ra(16); vT2 = ra(16); vQD = ra(); vTO = ra(4); vMSK = ra(); vMX = ra(); vMXW = ra(); vPW = ra(); vOA = ra(); vH = ra(); vPR = ra(); vCK = ra(); CK = ra(2, 2)
    a(f"""
    v_and_b32 v{vH}, 31, v{vL}
    v_and_b32 v{vt0}, 3, v{vL}
    v_lshlrev_b32 v{vt0}, 2, v{vt0}
    v_bfe_u32 v{vt1}, v{vL}, 2, 1
    v_lshl_or_b32 v{vt0}, v{vt1}, 1, v{vt0}
    v_bfe_u32 v{vt1}, v{vL}, 3, 1
    v_or_b32 v{vt0}, v{vt0}, v{vt1}
    v_lshrrev_b32 v{vt1}, 5, v{vL}
    v_xor_b32 v{vt0}, v{vt0}, v{vt1}
    v_lshlrev_b32 v{vt0}, 4, v{vt0}
    v_lshlrev_b32 v{vA}, 10, v{vH}
    v_add_u32 v{vA}, s{sCL}, v{vA}
    v_lshlrev_b32 v{vQ}, 8, v{vH}
    v_add_u32 v{vQ}, {QB}, v{vQ}
    """)
    for s in range(7, -1, -1):
        a(f"v_xor_b32 v{vt1}, {s << 5}, v{vt0}\n v_add_u32 v{vA+s}, v{vA}, v{vt1}\n v_add_u32 v{vQ+s}, v{vQ}, v{vt1}")
    a(f"""
    v_lshrrev_b32 v{vt1}, 5, v{vL}
    v_lshlrev_b32 v{vMX}, 5, v{vH}
    v_lshlrev_b32 v{vCK}, 9, v{vH}
    v_lshl_add_u32 v{vt1}, v{vt1}, 2, v{vMX}
    v_add_u32 v{vMX}, {MXB}, v{vMX}
    s_lshl_b32 s{sW8}, s{sW}, 3
    s_add_u32 s31, s{sW8}, {MXB}
    v_add_u32 v{vMXW}, s31, v{vt1}
    v_bfe_u32 v{vt0}, v{vL}, 4, 1
    v_lshlrev_b32 v{vt0}, 10, v{vt0}
    v_lshrrev_b32 v{vt1}, 5, v{vL}
    v_lshl_or_b32 v{vt0}, v{vt1}, 8, v{vt0}
    v_lshl_or_b32 v{vt0}, v{vN}, 4, v{vt0}
    s_lshl_b32 s31, s{sW}, 11
    s_add_u32 s31, s31, {PB}
    v_add_u32 v{vPW}, s31, v{vt0}
    v_add_u32 v{vPR}, {PB}, v{vL16}
    v_lshrrev_b32 v{vt0}, 5, v{vL}
    v_lshlrev_b32 v{vt0}, 4, v{vt0}
    v_bfe_u32 v{vt1}, v{vL}, 4, 1
    v_lshl_or_b32 v{vt0}, v{vt1}, 2, v{vt0}
    v_bfe_u32 v{vT+1}, v{vL}, 2, 2
    v_or_b32 v{vt0}, v{vt0}, v{vT+1}
    v_lshlrev_b32 v{vt0}, 10, v{vt0}
    v_and_b32 v{vT+2}, 1, v{vL}
    v_lshl_or_b32 v{vt0}, v{vT+2}, 3, v{vt0}
    s_lshl_b32 s31, s{sW}, 8
    v_add_u32 v{vt0}, s31, v{vt0}
    v_lshlrev_b32 v{vT+1}, 2, v{vT+1}
    v_lshl_or_b32 v{vT+1}, v{vt1}, 1, v{vT+1}
    v_bfe_u32 v{vT+2}, v{vL}, 1, 1
    v_xor_b32 v{vt1}, v{vT+1}, v{vT+2}
    v_lshlrev_b32 v{vt1}, 4, v{vt1}
    """)
    for x in range(16):
        a(f"v_xor_b32 v{vT+x}, {x << 4}, v{vt1}\n v_add_u32 v{vT+x}, v{vT+x}, v{vt0}")
        if x & 1: a(f"v_add_u32 v{vT+x}, 8192, v{vT+x}")
        a(f"v_add_u32 v{vT2+x}, 0x10000, v{vT+x}")
    a(f"""
    v_lshlrev_b32 v{vt0}, 2, v{vG}
    v_xor_b32 v{vt0}, v{vt0}, v{vN}
    v_lshlrev_b32 v{vt0}, 4, v{vt0}
    v_lshl_or_b32 v{vQD}, v{vG}, 8, v{vt0}
    s_mov_b32 s31, {16*OGS if omaj == 'c' else 4096}
    v_mul_lo_u32 v{vOA}, v{vG}, s31
    v_lshl_add_u32 v{vOA}, v{vN}, 4, v{vOA}
    v_mov_b32 v{vMSK}, 0xfffefffe
    s_lshr_b32 s{sB}, s{sKB}, 6
    s_lshl_b32 s{sQS}, s{sB}, 15
    s_add_u32 s{sQS}, s{sQS}, s{sQL}
    s_add_u32 s{sQS}, s{sQS}, {(WS_QG - QB) & 0xffffffff}
    s_lshl_b32 s{sHN}, s{sW}, 7
    s_lshl_b32 s{sCK}, s{sB}, 6
    s_add_u32 s{sCK}, s{sCK}, s{sHN}
    s_add_u32 s{sCK}, s{sCK}, {WS_CK}
    s_add_u32 s{sHN}, s{sHN}, {WS_HN}
    s_lshl_b32 s{sGO}, s{sIDX}, 7
    s_add_u32 s{sGO}, s{sGO}, {WS_GO}
    s_cmp_eq_u32 s{sW}, {HW}
    s_cselect_b32 s{sGO}, s{sGO}, {WS_USED}
    s_mul_i32 s{sOS}, s{sKB}, {256 if omaj == 'c' else OGS}
    s_mul_i32 s31, s{sW}, {OGS if omaj == 'c' else 256}
    s_add_u32 s{sOS}, s{sOS}, s31
    s_add_u32 s{sOS}, s{sOS}, {WS_OG}
    s_lshl_b32 s{sST}, s{sKB}, 9
    s_add_u32 s{sST}, s{sST}, {WS_ST}
    s_cmp_eq_u32 s{sW}, 1
    s_cselect_b64 s[{sM1}:{sM1+1}], -1, 0
    s_cmp_eq_u32 s{sW}, 2
    s_cselect_b64 s[{sM2}:{sM2+1}], -1, 0
    s_cmp_eq_u32 s{sW}, 3
    s_cselect_b64 s[{sM3}:{sM3+1}], -1, 0
    s_mov_b32 s{sSPIN}, 0
    """)
    if touch: a(f"""
    v_mul_u32_u24 v{vt0}, {TOUCH[1] - TOUCH[0]}, v{vL}
    s_mov_b32 s3, {TOUCH[0]}
    s_mov_b64 exec, 3
    buffer_load_dword v{vPF}, v{vt0}, {WS}, s3 offen
    s_mov_b64 exec, -1
    """)
    if pwA:
        Z = 200
        for k in range(4): a(f"v_mov_b32 v{Z+k}, 0")
        if 's' in pwA: a(f"""
        v_lshlrev_b32 v{vt0}, 4, v{vH}
        s_lshl_b32 exec_lo, 0xff, s{sW8}
        s_mov_b32 exec_hi, 0
        buffer_store_dwordx4 {vr(Z,4)}, v{vt0}, {WS}, s{sST} offen sc1
        s_mov_b64 exec, -1
        """)
        if 'f' in pwA: a(f"""
        v_lshrrev_b32 v{vt0}, 3, v{vL}
        v_mul_u32_u24 v{vt0}, {FPS}, v{vt0}
        v_and_b32 v{vt1}, 7, v{vL}
        v_lshl_add_u32 v{vt0}, v{vt1}, 4, v{vt0}
        s_mul_i32 s3, s{sW}, {8*FPS}
        s_lshl_b32 s31, s{sIDX}, 7
        s_add_u32 s3, s3, s31
        s_add_u32 s3, s3, {WS_FP + 128*128}
        buffer_store_dwordx4 {vr(Z,4)}, v{vt0}, {WS}, s3 offen sc1
        """)
        if 'g' in pwA: a(f"""
        v_lshrrev_b32 v{vt0}, 3, v{vL}
        v_and_b32 v{vt1}, 7, v{vL}
        v_lshlrev_b32 v{vt1}, 4, v{vt1}
        v_lshl_add_u32 v{vt0}, v{vt0}, 11, v{vt1}
        s_lshr_b32 s3, s{sIDX}, 3
        s_lshl_b32 s3, s3, 14
        s_and_b32 s31, s{sIDX}, 7
        s_lshl_b32 s31, s31, 8
        s_add_u32 s3, s3, s31
        s_lshl_b32 s31, s{sW}, 7
        s_add_u32 s3, s3, s31
        s_add_u32 s3, s3, {WS_GU}
        s_cmp_lt_u32 s{sW}, 2
        s_cselect_b32 s3, s3, {WS_USED}
        buffer_store_dwordx4 {vr(Z,4)}, v{vt0}, {WS}, s3 offen sc1
        """)
    fs("aSet")
    n3 = max(n2, min(32, first + 11)) if genA == 'late' else n2
    if n3 > n2: cloop("L_A_c25", n3, TH)
    if genA == 'late': a(f"s_waitcnt vmcnt({n3 - first})")
    gen_derive()
    HST = 4*OGS if omaj == 'c' else 1024
    sOS2 = sKI if False else 2
    vPR2 = ra()
    if alt: a(f"""
    s_and_b32 s31, s{sKB}, 1
    s_mul_i32 s3, s31, {16*HST}
    s_add_u32 s{sOS}, s{sOS}, s3
    s_lshl_b32 s3, s3, 1
    s_sub_u32 s3, s{sOS}, s3
    s_add_u32 s{sOS2x}, s3, {16*HST}
    s_lshl_b32 s31, s31, 10
    v_add_u32 v{vPR2}, 1024, v{vPR}
    v_subrev_u32 v{vPR2}, s31, v{vPR2}
    v_add_u32 v{vPR}, s31, v{vPR}
    """)
    else: a(f"s_add_u32 s{sOS2x}, s{sOS}, {16*HST}\n v_add_u32 v{vPR2}, 1024, v{vPR}")
    sOS2 = sOS2x
    lsb_tags(vTO, False)
    for k in range(4): a(f"v_mov_b32 v{NTC+k}, s{sW32}")
    if goat == 'c' and GI < 32 - NL:
        if n3 < GI: cloop("L_A_c28", GI, TH)
        notice(NTC, sGO)
    if cpre and clast is not None:
        cloop("L_A_c29", 32 - cpre, TH); cloop("L_A_c3", 32, TH, clast)
    elif max(n3, GI if goat == 'c' and GI < 32 - NL else 0) < 32 - NL: cloop("L_A_c3", 32 - NL, TH)
    if NL:
        if ckf: a(f"s_waitcnt vmcnt({NV})\n buffer_load_dwordx2 {vr(CK,2)}, v{vCK}, {WS}, s{sCK} offen sc1")
        else: a(f"s_waitcnt vmcnt({NV})\n buffer_load_dword v{vt1}, v{vCK}, {WS}, s{sHN} offen sc1")
        cloop("L_A_c4", 32, 0)
    if goat == 'c' and GI >= 32 - NL:
        if GV is not None: a(f"s_waitcnt vmcnt({GV})")
        notice(NTC, sGO)
    stamp(2)
    if late: code_pf("L_pf1", "L_pf1" if pf1all else "L_A_wait", "L_A_done")
    def qgather(ck=True):
        for i in range(8):
            t = vt0 if i % 2 == 0 else vt1
            kk = ((i & 1) << 1) | ((i >> 1) & 1)
            a(f"v_xor_b32 v{t}, {kk << 4}, v{vQD}\n s_add_u32 m0, s{sQL}, {i*1024}\n s_add_u32 s3, s{sQS}, {i*1024}\n buffer_load_dwordx4 v{t}, {WS}, s3 offen sc1 lds")
        if ck: a(f"buffer_load_dwordx2 {vr(CK,2)}, v{vCK}, {WS}, s{sCK} offen sc1")
    gl = [(s, mat) for s in range(4) for mat in range(2)]
    def gload(k):
        s_, mat = gl[k]
        a(f"s_add_u32 s3, s{sGS}, {s_*3584}\n buffer_load_dwordx4 {ar(128+16*mat+4*s_,4)}, v{vGL}, {(R2, R3)[mat]}, s3 offen {glupol}")
    if NL: a(f"s_waitcnt vmcnt({NL + int(goat == 'c' and GI >= 32 - NL) + int(late)})\n v_cmp_ne_u32 vcc, s{sW32}, v{CK+1 if ckf else vt1}\n s_cbranch_vccz L_A_g")
    elif PV is not None: a(f"s_waitcnt vmcnt({PV})")
    if qbar and not NL: a("s_barrier")
    if hint: poll("L_A_hn", f"v{vt1}", vCK, f"s{sHN}", vt1, "L_A_g")
    if ckf: poll("L_A_hn", vr(CK,2), vCK, f"s{sCK}", CK+1, "L_A_g", width="dwordx2")
    fs("aHn")
    qgather(not ckf)
    after = 0
    if goat == 'g': notice(NTC, sGO); after += 1
    if gat == 'q':
        for k in range(8): gload(k)
        after += 8
    q = []
    def wait_for(tag):
        if tag in q:
            k = q.index(tag); n = len(q) - 1 - k
            assert n <= 15
            a(f"s_waitcnt lgkmcnt({n})"); del q[:k+1]
    trl = [(ws, u, jh) for ws in range(4) for u in range(8) for jh in range(2)]
    trn = [0]
    def tr_next(n):
        for _ in range(n):
            if trn[0] >= 64: return
            ws, u, jh = trl[trn[0]]
            a(f"ds_read_b64_tr_b16 {ar((ws*8+u)*4+2*jh,2)}, v{(vT2 if ws >= 2 else vT)+2*u+jh} offset:{(ws&1)*32768}"); q.append(("T", ws, u, jh))
            trn[0] += 1
    def afrag(s_): return ar(160 + 4*s_, 4) if s_ < 24 else vr(160 + 4*(s_ - 24), 4)
    if apre:
        a(f"s_waitcnt vmcnt({(8 if ckf else 9) + after})")
        fs("aC")
        for s_ in range(32):
            a(f"ds_read_b128 {afrag(s_)}, v{vA+(s_&7)} offset:{(s_>>3)*256}")
            if s_ % 8 == 7: a("s_waitcnt lgkmcnt(6)")
        a("s_waitcnt lgkmcnt(0)")
    elif NT:
        a(f"s_waitcnt vmcnt({(8 if ckf else 9) + after})\n s_barrier")
        fs("aC")
        for k in range(NT):
            tr_next(1)
            if k % 8 == 7: a("s_waitcnt lgkmcnt(6)")
        a("s_waitcnt lgkmcnt(0)")
        q.clear()
    if not NT and fine: a(f"s_waitcnt vmcnt({9 + after})"); fs("aC")
    a(f"""
    s_waitcnt vmcnt({after})
    L_A_gw:
    v_cmp_ne_u32 vcc, s{sW32}, v{CK+1}
    s_cbranch_vccnz L_A_ck
    L_A_wait:
    """)
    fs("aQ")
    a("s_barrier")
    stamp(3)
    D = SD; NB = D + 1
    fA = 128; fB = fA + (0 if apre else 4*NB); S = ra(16, 4); vX = ra(4); vM = ra(2, 2); vm8 = fA
    vD0, vD1 = 200, 201
    sDS, sDL = sCL, sCS
    def rd_step(s):
        if not apre: a(f"ds_read_b128 {vr(fA+4*(s%NB),4)}, v{vA+(s&7)} offset:{(s>>3)*256}"); q.append(("A", s))
        a(f"ds_read_b128 {vr(fB+4*(s%NB),4)}, v{vQ+(s&7)} offset:{(s>>3)*8192}"); q.append(("B", s))
    for s in range(D): rd_step(s)
    a(f"""
    v_mov_b32 v{vt1}, 0x7f800000
    s_lshl_b32 s{sDS}, s{sIDX}, 14
    s_lshl_b32 s31, s{sW}, 8
    s_add_u32 s{sDS}, s{sDS}, s31
    s_lshl_b32 s{sDL}, s{sW}, 12
    s_add_u32 s{sDL}, s{sDL}, {DB}
    v_and_b32 v{vD0}, 0xff, v{vQD}
    v_lshl_or_b32 v{vD0}, v{vG}, 10, v{vD0}
    v_xor_b32 v{vD1}, 32, v{vD0}
    """)
    def dload(i):
        a(f"s_add_u32 m0, s{sDL}, {i*1024}\n s_add_u32 s3, s{sDS}, {i*4096}\n buffer_load_dwordx4 v{vD0 + (i & 1)}, {R4}, s3 offen {glupol} lds")
    for s in range(32):
        if s + D < 32: rd_step(s + D)
        wait_for(("B", s))
        b = fB + 4*(s % NB); x = vX + (s >> 3)
        a(f"v_mfma_f32_32x32x16_bf16 {vr(S,16)}, {afrag(s) if apre else vr(fA+4*(s%NB),4)}, {vr(b,4)}, {vr(S,16) if s else 0}")
        if apre: tr_next(2)
        if s & 7: a(f"v_add3_u32 v{x}, v{x}, v{b}, v{b+1}")
        else: a(f"v_add_u32 v{x}, v{b}, v{b+1}")
        a(f"v_add3_u32 v{x}, v{x}, v{b+2}, v{b+3}")
        if gat == 's' and s >= g0 and (s - g0) % gs == 0 and (s - g0) // gs < 8: gload((s - g0) // gs)
        if s == 24: a("s_barrier")
        if s in (0, 31): fs(f"aS{s}")
    a(f"""
    v_cndmask_b32 v{vX}, v{vX}, v{vX+1}, s[{sM1}:{sM1+1}]
    v_cndmask_b32 v{vX}, v{vX}, v{vX+2}, s[{sM2}:{sM2+1}]
    v_cndmask_b32 v{vX}, v{vX}, v{vX+3}, s[{sM3}:{sM3+1}]
    v_mov_b32 v{vt0}, v{vX}
    v_mov_b32 v242, s{sW32}
    v_mov_b32 v243, s{sW32}
    v_permlane32_swap_b32 v{vX}, v{vt0}
    v_add_u32 v{vX}, v{vX}, v{vt0}
    v_cmp_ne_u32 vcc, v{vX}, v{CK}
    v_lshlrev_b32 v{vt0}, 4, v{vH}
    """)
    a(f"v_max3_f32 v{vM}, v{S}, v{S+1}, v{S+2}\n v_max3_f32 v{vM+1}, v{S+3}, v{S+4}, v{S+5}")
    for k in (6, 10): a(f"v_max3_f32 v{vM}, v{vM}, v{S+k}, v{S+k+1}\n v_max3_f32 v{vM+1}, v{vM+1}, v{S+k+2}, v{S+k+3}")
    a(f"v_max3_f32 v{vM}, v{vM}, v{S+14}, v{S+15}\n v_max_f32 v{vM}, v{vM}, v{vM+1}")
    a(f"v_cndmask_b32 v{vM}, v{vM}, v{vt1}, vcc\n ds_write_b32 v{vMXW}, v{vM}\n s_waitcnt lgkmcnt(0)")
    q.clear()
    a(f"""
    s_barrier
    ds_read_b128 {vr(vm8,4)}, v{vMX}
    ds_read_b128 {vr(vm8+4,4)}, v{vMX} offset:16
    s_add_u32 s{sSPIN}, s{sSPIN}, 1
    s_cmp_lt_u32 s{sSPIN}, {SPIN}
    s_waitcnt lgkmcnt(1)
    v_max3_f32 v{vM}, v{vm8}, v{vm8+1}, v{vm8+2}
    s_waitcnt lgkmcnt(0)
    v_max3_f32 v{vM+1}, v{vm8+4}, v{vm8+5}, v{vm8+6}
    v_max3_f32 v{vM}, v{vM}, v{vm8+3}, v{vm8+7}
    v_max_f32 v{vM}, v{vM}, v{vM+1}
    v_cmp_eq_u32 vcc, v{vM}, v{vt1}
    v_mov_b32 v{vM+1}, v{vM}
    s_cbranch_scc0 L_A_ok
    s_cbranch_vccnz L_A_redo
    L_A_ok:
    """)
    stamp(4)
    P = fA + 8
    for k in range(8): a(f"v_pk_add_f32 {vr(S+2*k,2)}, {vr(S+2*k,2)}, {vr(vM,2)} neg_lo:[0,1] neg_hi:[0,1]")
    for h2 in range(2):
        for k in range(8): a(f"v_exp_f32 v{S+8*h2+k}, v{S+8*h2+k}")
        for k in range(4): a(f"v_cvt_pk_bf16_f32 v{P+4*h2+k}, v{S+8*h2+2*k}, v{S+8*h2+2*k+1}")
        a(f"ds_write_b128 v{vPW}, {vr(P+4*h2,4)} offset:{512*h2}")
    for k in range(4): a(f"v_pk_add_f32 {vr(S+2*k,2)}, {vr(S+2*k,2)}, {vr(S+8+2*k,2)}")
    for k in range(2): a(f"v_pk_add_f32 {vr(S+2*k,2)}, {vr(S+2*k,2)}, {vr(S+4+2*k,2)}")
    a(f"v_pk_add_f32 {vr(S,2)}, {vr(S,2)}, {vr(S+2,2)}\n v_add_f32 v{S}, v{S}, v{S+1}")
    PF = 128; O = 160; E = 224; ST_ = 240; vm8 = 244
    vD0n, vD1n = 252, 253
    a(f"ds_write_b32 v{vMXW}, v{S} offset:1024\n v_mov_b32 v{ST_}, v{vM}\n v_mov_b32 v{vD0n}, v{vD0}\n v_mov_b32 v{vD1n}, v{vD1}")
    q.clear()
    npre = 0
    if pv2:
        t0 = trn[0]; tr_next(NE); npre = trn[0] - t0
    a(f"s_waitcnt lgkmcnt({npre})\n s_barrier")
    vD0 = vD0n
    fs("aB2")
    def prd(ws, hh):
        a(f"ds_read_b128 {vr(PF+(hh*4+ws)*4,4)}, v{vPR2 if hh else vPR} offset:{ws*2048}"); q.append(("P", ws, hh))
    def epi(hh):
        ops = []
        for r in range(4):
            for d in range(4):
                ops.append(f"v_perm_b32 v{E+4*r+d}, v{O+32*hh+8*d+4+r}, v{O+32*hh+8*d+r}, s{sPERM}")
                ops.append(f"v_and_or_b32 v{E+4*r+d}, v{E+4*r+d}, v{vMSK}, v{vTO+d}")
            ops.append(f"s_add_u32 s3, s{sOS2 if hh else sOS}, {r*HST}\n buffer_store_dwordx4 {vr(E+4*r,4)}, v{vOA}, {WS}, s3 offen sc1")
        return ops
    stat_ops = {3: "WAITL", 4: f"v_pk_add_f32 {vr(vm8,2)}, {vr(vm8,2)}, {vr(vm8+2,2)}", 5: f"v_pk_add_f32 {vr(vm8+4,2)}, {vr(vm8+4,2)}, {vr(vm8+6,2)}",
                6: f"v_pk_add_f32 {vr(vm8,2)}, {vr(vm8,2)}, {vr(vm8+4,2)}", 7: f"v_add_f32 v{ST_+1}, v{vm8}, v{vm8+1}",
                8: f"s_lshl_b32 exec_lo, 0xff, s{sW8}\n s_mov_b32 exec_hi, 0\n buffer_store_dwordx4 {vr(ST_,4)}, v{vt0}, {WS}, s{sST} offen sc1\n s_mov_b64 exec, -1"}
    gBA = vA; gHR = vQ; gRW, gRR, gGU, gFP = vQ+4, vQ+5, vQ+6, vQ+7; gM24, gHW, gT = vMXW, vPW, 254
    gG = S; gF = S + 8; gBD = 128; gDD = 144; gHA = 152
    sGUs, sGUd, sFP = sQS, sHN, sCK
    def g_setup():
        t0, t1 = 254, 255
        a(f"""
        s_lshl_b32 s31, s{sW}, 11
        v_add_u32 v{gRW}, s31, v{vL16}
        s_and_b32 s3, s{sW}, 1
        s_lshl_b32 s31, s3, 10
        v_add_u32 v{gRR}, s31, v{vL16}
        v_lshrrev_b32 v{gGU}, 1, v{vN}
        v_lshlrev_b32 v{gGU}, 11, v{gGU}
        v_and_b32 v{t0}, 1, v{vN}
        v_lshl_or_b32 v{t0}, v{vG}, 1, v{t0}
        v_lshl_or_b32 v{gGU}, v{t0}, 4, v{gGU}
        s_lshl_b32 s{sGUs}, s{sIDX}, 11
        s_add_u32 s{sGUs}, s{sGUs}, {WS_GU}
        s_lshr_b32 s{sGUd}, s{sIDX}, 3
        s_lshl_b32 s{sGUd}, s{sGUd}, 14
        s_and_b32 s31, s{sIDX}, 7
        s_lshl_b32 s31, s31, 8
        s_lshl_b32 s3, s3, 7
        s_add_u32 s31, s31, s3
        s_add_u32 s{sGUd}, s{sGUd}, s31
        s_add_u32 s{sGUd}, s{sGUd}, {WS_GU}
        s_cmp_lt_u32 s{sW}, 2
        s_cselect_b32 s31, 112, 0
        s_cmp_lt_u32 s{sIDX}, s31
        s_cselect_b32 s{sGUd}, s{sGUd}, {WS_USED}
        v_mov_b32 v{gM24}, 0xffffff00
        v_lshrrev_b32 v{gFP}, 3, v{vN}
        v_lshl_add_u32 v{gFP}, v{vG}, 1, v{gFP}
        v_mul_u32_u24 v{gFP}, {FPS}, v{gFP}
        v_and_b32 v{t0}, 7, v{vN}
        v_lshl_add_u32 v{gFP}, v{t0}, 4, v{gFP}
        s_mul_i32 s{sFP}, s{sW}, {8*FPS}
        s_lshl_b32 s31, s{sIDX}, 7
        s_add_u32 s{sFP}, s{sFP}, s31
        s_add_u32 s{sFP}, s{sFP}, {WS_FP + 128*128}
        """)
    def g_setup2():
        t0, t1 = 254, 255
        a(f"""
        v_bfe_u32 v{t0}, v{vL}, 2, 2
        v_lshlrev_b32 v{t1}, 2, v{t0}
        v_and_b32 v{gBA}, 1, v{vG}
        v_lshl_or_b32 v{t1}, v{gBA}, 1, v{t1}
        v_bfe_u32 v{gBA}, v{vL}, 1, 1
        v_xor_b32 v{t1}, v{t1}, v{gBA}
        v_lshlrev_b32 v{t1}, 4, v{t1}
        v_lshlrev_b32 v{t0}, 8, v{t0}
        v_lshl_or_b32 v{t0}, v{vG}, 10, v{t0}
        v_and_b32 v{gBA}, 1, v{vL}
        v_lshl_or_b32 v{t0}, v{gBA}, 3, v{t0}
        v_add_u32 v{t0}, s{sDL}, v{t0}
        """)
        for u in range(8): a(f"v_xor_b32 v{gBA+u}, {u << 5}, v{t1}\n v_add_u32 v{gBA+u}, v{gBA+u}, v{t0}")
        a(f"""
        v_bfe_u32 v{gHW}, v{vL}, 2, 1
        v_lshlrev_b32 v{gHW}, 5, v{gHW}
        v_and_b32 v{t0}, 1, v{vL}
        v_lshl_or_b32 v{gHW}, v{t0}, 4, v{gHW}
        v_bfe_u32 v{t1}, v{vL}, 1, 1
        v_lshl_or_b32 v{gHW}, v{t1}, 3, v{gHW}
        v_lshrrev_b32 v{t1}, 5, v{vL}
        v_lshl_or_b32 v{gHW}, v{t1}, 1, v{gHW}
        v_and_b32 v{t1}, 1, v{vG}
        v_lshl_or_b32 v{gHW}, v{t1}, 2, v{gHW}
        s_lshl_b32 s31, s{sW}, 7
        s_add_u32 s31, s31, {HB}
        v_add_u32 v{gHW}, s31, v{gHW}
        v_lshlrev_b32 v{t0}, 5, v{t0}
        v_lshl_add_u32 v{t0}, v{vG}, 3, v{t0}
        v_add_u32 v{t0}, s31, v{t0}
        s_add_u32 s31, s31, 64
        v_mov_b32 v{gHR+3}, s31
        v_mov_b32 v{gDD}, 0
        v_mov_b32 v{gDD+1}, 0
        ds_write_b64 v{gHR+3}, {vr(gDD,2)}
        v_lshrrev_b32 v{t1}, 2, v{vN}
        """)
        for k in range(4): a(f"v_cmp_eq_u32 vcc, {k}, v{t1}\n v_cndmask_b32 v{gHR+k}, v{gHR+3}, v{t0}, vcc")
    def g_stage1a():
        ops = [f"v_mfma_f32_16x16x32_bf16 {vr(gG+4*mat,4)}, {vr(OHG+4*s_,4)}, {ar(128+16*mat+4*s_,4)}, {vr(gG+4*mat,4) if s_ else 0}" for s_ in range(4) for mat in range(2)]
        return ops + [f"ds_write_b128 v{gRW}, {vr(gG,4)}", f"ds_write_b128 v{gRW}, {vr(gG+4,4)} offset:1024", "s_waitcnt lgkmcnt(0)"]
    def g_stage1b():
        B = S
        ops = [f"ds_read_b128 {vr(B+4*ww,4)}, v{gRR} offset:{ww*2048}" for ww in range(4)] + ["s_waitcnt lgkmcnt(0)"]
        for k in (0, 2): ops += [f"v_pk_add_f32 {vr(B+k,2)}, {vr(B+k,2)}, {vr(B+4+k,2)}", f"v_pk_add_f32 {vr(B+8+k,2)}, {vr(B+8+k,2)}, {vr(B+12+k,2)}"]
        for k in (0, 2): ops += [f"v_pk_add_f32 {vr(B+k,2)}, {vr(B+k,2)}, {vr(B+8+k,2)}"]
        ops += [f"v_and_or_b32 v{B+k}, v{B+k}, v{gM24}, s{sTAU+k}" for k in range(4)]
        return ops + [f"buffer_store_dwordx4 {vr(B,4)}, v{gGU}, {WS}, s{sGUd} offen sc1"]
    fill = []
    if glu2:
        assert NT == 64 and not pv2 and dat == 'e' and gat == 's'
        fill = [l.strip() for l in capture(g_setup)]
    def pv(ws, u, hh):
        a(f"v_mfma_f32_16x16x32_bf16 {vr(O+32*hh+4*u,4)}, {vr(PF+16*hh+4*ws,4)}, {ar((ws*8+u)*4,4)}, {vr(O+32*hh+4*u,4) if ws else 0}")
    if not pv2:
        prd(0, 0)
        while trn[0] < 4: tr_next(1)
        a(f"ds_read_b128 {vr(vm8,4)}, v{vMX} offset:1024\n ds_read_b128 {vr(vm8+4,4)}, v{vMX} offset:1040"); q.append("L0"); q.append("L1")
        stamp(5)
        for ws in range(4):
            for u in range(8):
                n = ws*8 + u
                while trn[0] < 64 and trn[0] <= 2*n + 1 + 8: tr_next(1)
                if u == 2 and ws < 3: prd(ws + 1, 0)
                if n in (26, 27, 28, 29): prd(n - 26, 1)
                wait_for(("P", ws, 0))
                if ("T", ws, u, 1) in q: wait_for(("T", ws, u | 1, 1))
                a(f"v_mfma_f32_16x16x32_bf16 {vr(O+4*u,4)}, {vr(PF+4*ws,4)}, {ar((ws*8+u)*4,4)}, {vr(O+4*u,4) if ws else 0}")
                if n in stat_ops:
                    if stat_ops[n] == "WAITL": wait_for("L1")
                    else: a(stat_ops[n])
                if glu2 and n >= 9:
                    for _ in range(2):
                        if fill: a(fill.pop(0))
                if glu2 and s1 == 'p' and n == 31:
                    a("s_waitcnt vmcnt(1)")
                    for op in g_stage1a(): a(op)
                    q.clear()
                    a("s_barrier")
                    fill2 = g_stage1b()
                if dat == 'm' and n in (11, 14, 17, 20): dload((n - 11) // 3)
                if gat == 'p' and n >= 10 and n % 2 == 0 and (n - 10) // 2 < 8: gload((n - 10) // 2)
            if gat == 'p' and n >= 10 and n % 2 == 0 and (n - 10) // 2 < 8: gload((n - 10) // 2)
        fs("aP1")
        assert not fill
        e0 = epi(0); k = 0
        e1 = epi(1); e1a = [e1[9*r + x] for r in range(3) for x in (0, 1)]; e1early = list(e1a)
        for ws in range(4):
            for u in range(8):
                wait_for(("P", ws, 1))
                a(f"v_mfma_f32_16x16x32_bf16 {vr(O+32+4*u,4)}, {vr(PF+16+4*ws,4)}, {ar((ws*8+u)*4,4)}, {vr(O+32+4*u,4) if ws else 0}")
                if glu2 and s1 == 'p' and ws*8 + u < 9:
                    for _ in range(2):
                        if fill2: a(fill2.pop(0))
                if ws*8 + u >= 7:
                    for _ in range(2 if epo or (ws*8+u) % 2 else 1):
                        if k < len(e0): a(e0[k]); k += 1
                        elif epo and ws*8 + u >= 29 and e1a: a(e1a.pop(0))
        while k < len(e0): a(e0[k]); k += 1
    else:
        prd(0, 0); prd(0, 1)
        a(f"ds_read_b128 {vr(vm8,4)}, v{vMX} offset:1024\n ds_read_b128 {vr(vm8+4,4)}, v{vMX} offset:1040"); q.append("L0"); q.append("L1")
        stamp(5)
        more = [(1, 0), (1, 1), (2, 0), (3, 0), (2, 1), (3, 1)]
        def room(k):
            if len(q) + k > 15:
                a(f"s_waitcnt lgkmcnt({RT})"); del q[:len(q) - RT]
        n = 0
        for ws in range(2):
            for u in range(8):
                for hh in range(2):
                    if n in (9, 10, 28, 29, 30, 31): room(1); prd(*more.pop(0))
                    if trn[0] < n1max: room(2); tr_next(2)
                    wait_for(("P", ws, hh))
                    if hh == 0: wait_for(("T", ws, u, 1))
                    pv(ws, u, hh)
                    if n in stat_ops:
                        if stat_ops[n] == "WAITL": wait_for("L1")
                        else: a(stat_ops[n])
                    n += 1
        fs("aP1")
        for ws in (2, 3):
            for u in range(8):
                if trn[0] < 64: room(2); tr_next(2)
                wait_for(("P", ws, 0))
                if ("T", ws, u, 1) in q: wait_for(("T", ws, u | 1, 1))
                pv(ws, u, 0)
        e0 = epi(0); k = 0; n = 0
        for ws in (2, 3):
            for u in range(8):
                wait_for(("P", ws, 1))
                pv(ws, u, 1)
                if n >= 3:
                    for _ in range(2):
                        if k < len(e0): a(e0[k]); k += 1
                n += 1
        while k < len(e0): a(e0[k]); k += 1
    fs("aP2")
    for op in epi(1):
        if epo and op in e1early and op not in e1a: continue
        a(op)
    stamp(6)
    if not glu2:
        a(f"s_cmp_ge_u32 s{sIDX}, 112\n s_cbranch_scc1 L_A_done")
        rg = RA(128, 224)
        G = rg(8, 4); F = rg(16, 4); BD = rg(16, 4); DD = rg(32, 4); HA = rg(2, 2); vD = rg(); vD2 = rg(); vR = rg(); vM24 = rg(); vFP = rg(); vBAD = rg(); vBA = rg(8); EE = F
        RB = 0
        sGUs, sGUd, sFP = sQS, sHN, sCK
        nd = 0
        if gat == 'e':
            for k in range(8): gload(k)
        if dat == 'e':
            for i in range(4): dload(i)
            nd = 4
        if gat == 'e': a(f"s_waitcnt vmcnt({nd})")
        elif gat == 'p': a(f"s_waitcnt vmcnt({8 + nd})")
        else: a(f"s_waitcnt vmcnt({8 + nd + (0 if dat == 'm' else 1)})")
        for s in range(4):
            for mat in range(2):
                a(f"v_mfma_f32_16x16x32_bf16 {vr(G+4*mat,4)}, {vr(OHG+4*s,4)}, {ar(128+16*mat+4*s,4)}, {vr(G+4*mat,4) if s else 0}")
        a(f"""
        s_lshl_b32 s31, s{sW}, 11
        v_add_u32 v{vD}, s31, v{vL16}
        s_and_b32 s3, s{sW}, 1
        s_lshl_b32 s31, s3, 10
        v_add_u32 v{vD2}, s31, v{vL16}
        v_lshrrev_b32 v{vR}, 1, v{vN}
        v_lshlrev_b32 v{vR}, 11, v{vR}
        v_and_b32 v{vBAD}, 1, v{vN}
        v_lshl_or_b32 v{vBAD}, v{vG}, 1, v{vBAD}
        v_lshl_or_b32 v{vR}, v{vBAD}, 4, v{vR}
        s_barrier
        ds_write_b128 v{vD}, {vr(G,4)} offset:{RB}
        ds_write_b128 v{vD}, {vr(G+4,4)} offset:{RB+1024}
        s_lshl_b32 s{sGUs}, s{sIDX}, 11
        s_add_u32 s{sGUs}, s{sGUs}, {WS_GU}
        s_lshr_b32 s{sGUd}, s{sIDX}, 3
        s_lshl_b32 s{sGUd}, s{sGUd}, 14
        s_and_b32 s31, s{sIDX}, 7
        s_lshl_b32 s31, s31, 8
        s_lshl_b32 s3, s3, 7
        s_add_u32 s31, s31, s3
        s_add_u32 s{sGUd}, s{sGUd}, s31
        s_add_u32 s{sGUd}, s{sGUd}, {WS_GU}
        v_mov_b32 v{vM24}, 0xffffff00
        s_cmp_ge_u32 s{sW}, 2
        s_waitcnt lgkmcnt(0)
        s_barrier
        s_cbranch_scc1 L_A_nogu
        """)
        for ww in range(4): a(f"ds_read_b128 {vr(F+4*ww,4)}, v{vD2} offset:{RB + ww*2048}")
        a("s_waitcnt lgkmcnt(0)")
        for k in (0, 2): a(f"v_pk_add_f32 {vr(F+k,2)}, {vr(F+k,2)}, {vr(F+4+k,2)}\n v_pk_add_f32 {vr(F+8+k,2)}, {vr(F+8+k,2)}, {vr(F+12+k,2)}")
        for k in (0, 2): a(f"v_pk_add_f32 {vr(F+k,2)}, {vr(F+k,2)}, {vr(F+8+k,2)}")
        for k in range(4): a(f"v_and_or_b32 v{F+k}, v{F+k}, v{vM24}, s{sTAU+k}")
        a(f"buffer_store_dwordx4 {vr(F,4)}, v{vR}, {WS}, s{sGUd} offen sc1\n L_A_nogu:")
        fs("aGU")
        a(f"""
        v_bfe_u32 v{vD}, v{vL}, 2, 2
        v_lshlrev_b32 v{vD2}, 2, v{vD}
        v_and_b32 v{vR}, 1, v{vG}
        v_lshl_or_b32 v{vD2}, v{vR}, 1, v{vD2}
        v_bfe_u32 v{vR}, v{vL}, 1, 1
        v_xor_b32 v{vD2}, v{vD2}, v{vR}
        v_lshlrev_b32 v{vD2}, 4, v{vD2}
        v_lshlrev_b32 v{vD}, 8, v{vD}
        v_lshl_or_b32 v{vD}, v{vG}, 10, v{vD}
        v_and_b32 v{vR}, 1, v{vL}
        v_lshl_or_b32 v{vD}, v{vR}, 3, v{vD}
        v_add_u32 v{vD}, s{sDL}, v{vD}
        """)
        for u in range(8): a(f"v_xor_b32 v{vR}, {u << 5}, v{vD2}\n v_add_u32 v{vBA+u}, v{vR}, v{vD}")
        if dat == 'm':
            for u in range(8): a(f"ds_read_b64_tr_b16 {vr(BD+2*u,2)}, v{vBA+u}")
        fp_addr(vFP, vM24)
        a(f"""
        s_mul_i32 s{sFP}, s{sW}, {8*FPS}
        s_lshl_b32 s31, s{sIDX}, 7
        s_add_u32 s{sFP}, s{sFP}, s31
        s_add_u32 s{sFP}, s{sFP}, {WS_FP + 128*128}
        v_bfe_u32 v{vD}, v{vL}, 2, 1
        v_lshlrev_b32 v{vD}, 5, v{vD}
        v_and_b32 v{vR}, 1, v{vL}
        v_lshl_or_b32 v{vD}, v{vR}, 4, v{vD}
        v_bfe_u32 v{vR}, v{vL}, 1, 1
        v_lshl_or_b32 v{vD}, v{vR}, 3, v{vD}
        v_lshrrev_b32 v{vR}, 5, v{vL}
        v_lshl_or_b32 v{vD}, v{vR}, 1, v{vD}
        v_and_b32 v{vR}, 1, v{vG}
        v_lshl_or_b32 v{vD}, v{vR}, 2, v{vD}
        s_lshl_b32 s31, s{sW}, 6
        s_add_u32 s31, s31, {HB}
        v_add_u32 v{vD}, s31, v{vD}
        v_and_b32 v{vR}, 1, v{vL}
        v_lshlrev_b32 v{vR}, 5, v{vR}
        v_lshl_add_u32 v{vR}, v{vG}, 3, v{vR}
        v_add_u32 v{vR}, s31, v{vR}
        s_mov_b32 s{sSPIN}, 0
        """)
        if gudrain or dat == 'e': a("s_waitcnt vmcnt(0)")
        if dat == 'e':
            for u in range(8): a(f"ds_read_b64_tr_b16 {vr(BD+2*u,2)}, v{vBA+u}")
        if gudrain: a("s_barrier")
        fs("aGd")
        a(f"""
        L_A_gu:
        buffer_load_dwordx4 {vr(F,4)}, v{vL16}, {WS}, s{sGUs} offen sc1
        buffer_load_dwordx4 {vr(F+4,4)}, v{vL16}, {WS}, s{sGUs} offen offset:1024 sc1
        v_mov_b32 v{vBAD}, 0
        s_add_u32 s{sSPIN}, s{sSPIN}, 1
        s_waitcnt vmcnt(0)
        """)
        for k in range(8): a(f"v_bitop3_b32 v{vBAD}, v{vBAD}, v{F+k}, s{sTAU+(k&3)} bitop3:0xf6")
        a(f"""
        v_and_b32 v{vBAD}, 0xff, v{vBAD}
        v_cmp_ne_u32 vcc, 0, v{vBAD}
        s_cmp_lt_u32 s{sSPIN}, {SPIN*4}
        s_cbranch_scc0 L_A_guok
        s_cbranch_vccnz L_A_gu
        L_A_guok:
        """)
        fs("aGk")
        for k in range(8): a(f"v_and_b32 v{F+k}, v{vM24}, v{F+k}")
        for k in (0, 2): a(f"v_pk_add_f32 {vr(F+k,2)}, {vr(F+k,2)}, {vr(F+4+k,2)}")
        a(f"""
        v_permlane16_swap_b32 v{F}, v{F+2}
        v_permlane16_swap_b32 v{F+1}, v{F+3}
        v_add_f32 v{F}, v{F}, v{F+2}
        v_add_f32 v{F+1}, v{F+1}, v{F+3}
        v_permlane32_swap_b32 v{F}, v{F+1}
        v_add_f32 v{F}, v{F}, v{F+1}
        v_cvt_pk_bf16_f32 v{F}, v{F}, v{F}
        v_and_b32 v{F}, 0xffff0000, v{F}
        v_mul_f32_dpp v{F}, v{F}, v{F} row_ror:8 row_mask:0xf bank_mask:0xf
        v_cvt_pk_bf16_f32 v{F}, v{F}, v{F}
        ds_write_b16 v{vD}, v{F}
        s_waitcnt lgkmcnt(0)
        ds_read_b64 {vr(HA,2)}, v{vR}
        s_waitcnt lgkmcnt(0)
        """)
        for u in range(8): a(f"v_mfma_f32_16x16x16_bf16 {vr(DD+4*u,4)}, {vr(HA,2)}, {vr(BD+2*u,2)}, 0")
        for k in range(4):
            for op in fp_ops(k, DD, EE, vFP, vM24, sFP): a(op)
    else:
        a(f"s_cmp_ge_u32 s{sIDX}, 112\n s_cbranch_scc1 L_A_done")
        if s1 == 'e':
            a("s_waitcnt vmcnt(9)")
            for op in g_stage1a() + ["s_barrier"] + g_stage1b(): a(op)
        fs("aGU")
        for i in range(4): dload(i)
        g_setup2()
        if s1 == 'p': a(f"buffer_load_dwordx4 {vr(gF,4)}, v{vL16}, {WS}, s{sGUs} offen sc1\n buffer_load_dwordx4 {vr(gF+4,4)}, v{vL16}, {WS}, s{sGUs} offen offset:1024 sc1")
        a(f"s_mov_b32 s{sSPIN}, 0")
        for k in range(8): a(f"v_mov_b32 v{gDD+k}, 0")
        a(f"s_waitcnt vmcnt({2 if s1 == 'p' else 0})")
        for u in range(8): a(f"ds_read_b64_tr_b16 {vr(gBD+2*u,2)}, v{gBA+u}")
        if s1 == 'e': a("s_barrier")
        fs("aGd")
        if s1 == 'p': a("s_branch L_A_gu1")
        a(f"""
        L_A_gu:
        buffer_load_dwordx4 {vr(gF,4)}, v{vL16}, {WS}, s{sGUs} offen sc1
        buffer_load_dwordx4 {vr(gF+4,4)}, v{vL16}, {WS}, s{sGUs} offen offset:1024 sc1
        L_A_gu1:
        s_add_u32 s{sSPIN}, s{sSPIN}, 1
        s_cmp_lt_u32 s{sSPIN}, {SPIN*4}
        s_waitcnt vmcnt(0)
        """)
        for k in range(8): a(f"v_xor_b32 v{gF+k}, s{sTAU+(k&3)}, v{gF+k}")
        a(f"v_or3_b32 v{gT}, v{gF}, v{gF+1}, v{gF+2}\n v_or3_b32 v{gT+1}, v{gF+3}, v{gF+4}, v{gF+5}\n v_or3_b32 v{gT}, v{gT}, v{gF+6}, v{gF+7}")
        a(f"""
        v_bitop3_b32 v{gT}, v{gT}, v{gT+1}, v{gM24} bitop3:0x54
        v_cmp_ne_u32 vcc, 0, v{gT}
        v_pk_add_f32 {vr(gF,2)}, {vr(gF,2)}, {vr(gF+4,2)}
        v_pk_add_f32 {vr(gF+2,2)}, {vr(gF+2,2)}, {vr(gF+6,2)}
        s_cbranch_scc0 L_A_guok
        s_cbranch_vccnz L_A_gu
        L_A_guok:
        """)
        fs("aGk")
        F = gF
        a(f"""
        v_permlane16_swap_b32 v{F}, v{F+2}
        v_permlane16_swap_b32 v{F+1}, v{F+3}
        v_add_f32 v{F}, v{F}, v{F+2}
        v_add_f32 v{F+1}, v{F+1}, v{F+3}
        v_permlane32_swap_b32 v{F}, v{F+1}
        v_add_f32 v{F}, v{F}, v{F+1}
        v_cvt_pk_bf16_f32 v{F}, v{F}, v{F}
        v_and_b32 v{F}, 0xffff0000, v{F}
        v_mul_f32_dpp v{F}, v{F}, v{F} row_ror:8 row_mask:0xf bank_mask:0xf
        v_cvt_pk_bf16_f32 v{F}, v{F}, v{F}
        ds_write_b16 v{gHW}, v{F}
        s_waitcnt lgkmcnt(0)
        """)
        for k in range(4): a(f"ds_read_b64 {vr(gHA+2*k,2)}, v{gHR+k}")
        for k in range(4):
            a(f"s_waitcnt lgkmcnt({3-k})")
            for u in (2*k, 2*k+1): a(f"v_mfma_f32_16x16x16_bf16 {vr(gDD+4*(u&1),4)}, {vr(gHA+2*k,2)}, {vr(gBD+2*u,2)}, {vr(gDD+4*(u&1),4)}")
        for d in range(4): a(f"v_and_or_b32 v{gF+d}, v{gDD+4*(d>>1)+(d&1)}, v{gM24}, s{sTAU+d}")
        a(f"buffer_store_dwordx4 {vr(gF,4)}, v{gFP}, {WS}, s{sFP} offen sc1")
    a("L_A_done:")
    stamp(7)
    a("s_branch L_fin" if diag else "s_endpgm")
    a("L_A_redo:\n s_barrier\n L_A_g2:")
    qgather()
    a(f"""
    s_waitcnt vmcnt(0)
    s_branch L_A_gw
    L_A_ck:
    buffer_load_dwordx2 {vr(CK,2)}, v{vCK}, {WS}, s{sCK} offen sc1
    s_add_u32 s{sSPIN}, s{sSPIN}, 1
    s_cmp_lt_u32 s{sSPIN}, {SPIN}
    s_waitcnt vmcnt(0)
    s_cbranch_scc0 L_A_wait
    v_cmp_ne_u32 vcc, s{sW32}, v{CK+1}
    s_cbranch_vccnz L_A_ck
    s_branch L_A_g2
    """)
    partA = a.lines; a.lines = []

    UK, WO, XN, QP, QO, WB, CC, CT, RD = 98304, 0, 131072, 139264, 144384, 144896, 145920, 148480, 149504
    sa = SA([16, 17, 18, 19, 20, 21, 22, 23, 6, 7, 88, 89, 90, 91, 92, 93, 94, 95])
    sMK = sa.pair()
    sWQ = 97
    sUL, sSC, sQD, sHN, sCK, sWOo, sWOl, sOS, sFPd, sF1, sF2, sGO, sPP = [sa() for _ in range(13)]
    ra = RA(10, 256)
    vq = VQ(a)
    MU = ra(4, 4); X = ra(8, 4); F = ra(16, 4); T = ra(8, 4); XR = ra(16, 4); OH = ra(8, 4); ACC = ra(4, 4); vWQ = ra(); vUK = ra(); vu0 = ra(); vu1 = ra()
    a(f"""
    v_lshlrev_b32 v{vt0}, 5, v{vL}
    v_lshlrev_b32 v{vWQ}, 16, v{vG}
    v_lshl_add_u32 v{vWQ}, v{vN}, 4, v{vWQ}
    v_add_u32 v{vWQ}, s31, v{vWQ}
    s_mov_b32 s38, 0x400000
    s_waitcnt lgkmcnt(0)
    s_mov_b32 s36, s{pWQ}
    s_mov_b32 s37, s{pWQ+1}
    s_mov_b32 s32, s{pWS}
    s_mov_b32 s33, s{pWS+1}
    global_load_dwordx4 {vr(X,4)}, v{vt0}, s[{pX}:{pX+1}]
    global_load_dwordx4 {vr(X+4,4)}, v{vt0}, s[{pX}:{pX+1}] offset:16
    """)
    if tlb: a(f"s_mov_b64 s[0:1], s[{pG}:{pG+1}]\n s_mov_b64 s[100:101], s[{pU}:{pU+1}]\n s_mov_b64 s[26:27], s[{pD}:{pD+1}]")
    if cpre: a(f"s_mov_b64 s[0:1], s[{pC}:{pC+1}]")
    fs("wK")
    vq.add("x")
    def wq_load(s):
        if s % 8 == 0 and s: a(f"s_add_u32 s{sWQ}, s{sWQ}, {0x100000 - 7*8192}\n s_and_b32 s{sWQ}, s{sWQ}, 0x3fffff")
        elif s: a(f"s_addk_i32 s{sWQ}, 0x2000")
        a(f"buffer_load_dwordx4 {ar(4*s,4)}, v{vWQ}, {R1}, s{sWQ} offen {qown if s < 8 else qpol}"); vq.add(("q", s))
    for s in range(8): wq_load(s)
    def gen_load(i): a(f"buffer_load_dword v{vGen}, v{vZ}, {WS}, 0 offen sc1"); vq.add("gen")
    srd(40, pUK, 0x400000)
    a(f"""
    v_xor_b32 v{vUK}, v{vN}, v{vG}
    v_lshlrev_b32 v{vUK}, 4, v{vUK}
    v_lshl_or_b32 v{vUK}, v{vG}, 13, v{vUK}
    s_lshl_b32 s{sUL}, s{sW}, 13
    s_add_u32 s{sUL}, s{sUL}, {UK}
    v_lshlrev_b32 v{vL16}, 4, v{vL}
    """)
    def uk_load(i):
        t = vu0 if i % 2 == 0 else vu1
        a(f"v_xor_b32 v{t}, {(i&3) << 6}, v{vUK}\n s_add_u32 m0, s{sUL}, {i*1024}\n s_add_u32 s3, s{sROW}, {i*4*8192}\n buffer_load_dwordx4 v{t}, {R2}, s3 offen {ukpol} lds"); vq.add(("u", i))
    rest = [("q", s) for s in range(8, 32)]
    if fakeXq: rest = []
    rest[ukpos:ukpos] = [("u", i) for i in range(8)]
    rest.insert(genW - 8, ("g", 0))
    def wissue(n):
        for _ in range(n):
            if rest:
                k, i = rest.pop(0); {"q": wq_load, "u": uk_load, "g": gen_load}[k](i)
    wissue(w0)
    multipliers(MU)
    vQPW = ra(); vQPR = ra(); vUA = ra(4, 4); vQOW = ra(); vQS = ra(); vXW = ra(); vXR = ra(4, 4); vQOR = ra(); vCKW = ra()
    a(f"""
    s_lshl_b32 s31, s{sW}, 11
    s_add_u32 s31, s31, {XN}
    v_lshl_add_u32 v{vXW}, v{vL}, 5, s31
    v_bfe_u32 v{vt0}, v{vL}, 3, 1
    v_lshlrev_b32 v{vt0}, 10, v{vt0}
    v_lshl_add_u32 v{vt0}, v{vG}, 4, v{vt0}
    s_lshl_b32 s3, s{sW}, 6
    s_add_u32 s31, s31, s3
    v_add_u32 v{vt0}, s31, v{vt0}
    """)
    for t in range(4): a(f"s_add_u32 s3, s{sJ}, {t}\n s_and_b32 s3, s3, 3\n s_lshl_b32 s3, s3, 8\n v_add_u32 v{vXR+t}, s3, v{vt0}")
    stamp(1)
    vq.wait("x")
    fs("wX")
    done = 0
    for k, l in enumerate(capture(layernorm, X, F, T)):
        a.lines.append(l)
        if k >= lnstart and (k - lnstart) % lnstep == 0 and done < nln: wissue(1); done += 1
    a(f"ds_write_b128 v{vXW}, {vr(X,4)}\n ds_write_b128 v{vXW}, {vr(X+4,4)} offset:16\n s_waitcnt lgkmcnt(0)")
    for t in range(4): a(f"ds_read_b128 {vr(XR+4*t,4)}, v{vXR+t}")
    def qtail_setup():
        a(f"""
        v_lshrrev_b32 v{vt0}, 5, v{vL}
        s_lshl_b32 s31, s{sW}, 1
        v_add_u32 v{vt0}, s31, v{vt0}
        v_mul_u32_u24 v{vt0}, 272, v{vt0}
        v_lshl_add_u32 v{vt0}, v{vN}, 4, v{vt0}
        v_and_b32 v{vt1}, 1, v{vG}
        v_lshl_add_u32 v{vt0}, v{vt1}, 3, v{vt0}
        v_add_u32 v{vQPW}, {QP}, v{vt0}
        v_lshlrev_b32 v{vQOW}, 8, v{vt1}
        v_lshlrev_b32 v{vQS}, 15, v{vt1}
        v_lshl_add_u32 v{vQS}, v{vN}, 4, v{vQS}
        v_and_b32 v{vCKW}, 3, v{vL}
        v_lshlrev_b32 v{vCKW}, 4, v{vCKW}
        v_lshl_add_u32 v{vCKW}, v{vt1}, 6, v{vCKW}
        v_lshrrev_b32 v{vt0}, 5, v{vL}
        v_cmp_eq_u32 vcc, 1, v{vt0}
        v_lshl_add_u32 v{vQOW}, v{vt0}, 5, v{vQOW}
        v_lshl_add_u32 v{vQOW}, v{vN}, 1, v{vQOW}
        s_lshl_b32 s31, s{sW}, 6
        s_add_u32 s31, s31, {QO}
        v_add_u32 v{vQOW}, s31, v{vQOW}
        v_and_b32 v{vt0}, 3, v{vN}
        v_lshlrev_b32 v{vt0}, 1, v{vt0}
        v_bfe_u32 v{vt1}, v{vN}, 2, 1
        v_or_b32 v{vt0}, v{vt0}, v{vt1}
        v_mul_u32_u24 v{vt0}, 272, v{vt0}
        v_lshl_add_u32 v{vt0}, v{vG}, 4, v{vt0}
        v_add_u32 v{vQPR}, {QP}, v{vt0}
        v_lshlrev_b32 v{vt0}, 8, v{vN}
        v_add_u32 v{vt0}, s{sUL}, v{vt0}
        v_xor_b32 v{vt1}, v{vN}, v{vG}
        v_lshlrev_b32 v{vt1}, 4, v{vt1}
        """)
        for s in range(4): a(f"v_xor_b32 v{vUA+s}, {s << 6}, v{vt1}\n v_add_u32 v{vUA+s}, v{vUA+s}, v{vt0}")
        a(f"""
        v_add_u32 v{vQOR}, {QO}, v{vL16}
        s_mov_b32 s{sSC}, {hex(f2u(SCALE))}
        s_lshl_b32 s{sQD}, s{sJ}, 13
        s_add_u32 s{sQD}, s{sQD}, s{sH8}
        s_add_u32 s{sQD}, s{sQD}, {WS_QG}
        s_lshl_b32 s{sCK}, s{sIDX}, 7
        s_add_u32 s{sHN}, s{sCK}, {WS_HN}
        s_add_u32 s{sCK}, s{sCK}, {WS_CK}
        s_cmp_eq_u32 s{sW}, 0
        s_cselect_b32 s{sHN}, s{sHN}, {WS_USED}
        """)
    qtail_setup()
    a("s_waitcnt lgkmcnt(0)")
    fs("wLN")
    UA = ra(32, 4); QF = ra(16, 4); D2 = ra(8, 4)
    def fake_hop(lab, base, data, tmp):
        a(f"""
        s_lshl_b32 s3, s{sIDX}, 10
        s_lshl_b32 s31, s{sW}, 8
        s_add_u32 s3, s3, s31
        s_add_u32 s3, s3, {base}
        v_lshlrev_b32 v{vt0}, 2, v{vL}
        v_mov_b32 v{data}, s{sW32}
        buffer_store_dword v{data}, v{vt0}, {WS}, s3 offen {xpol}
        s_and_b32 s3, s{sIDX}, 0xfc
        s_lshl_b32 s3, s3, 10
        s_add_u32 s3, s3, s31
        s_add_u32 s{sPP}, s3, {base}
        v_lshlrev_b32 v{vt1}, 10, v{vG}
        v_lshl_add_u32 v{vt1}, v{vN}, 4, v{vt1}
        s_waitcnt vmcnt(0)
        """)
        poll(lab, vr(tmp, 4), vt1, f"s{sPP}", tmp + 3, lab + "d", width="dwordx4")
    onehot(OH, XR, 0, MU)
    for s in range(8 if fakeXq else 32):
        if s + 1 < 32: onehot(OH + 4*((s+1)&1), XR + ((s+1) >> 1), (s+1) & 1, MU)
        vq.wait(("q", s))
        a(f"v_mfma_f32_16x16x32_bf16 {vr(ACC,4)}, {vr(OH+4*(s&1),4)}, {ar(4*s,4)}, {vr(ACC,4) if s else 0}")
        if s % qstep == 0: wissue(2 if s < q2 else 1)
        if s == (7 if fakeXq else min(genW, 31)):
            vq.wait("gen")
            gen_derive()
            for k in range(4): a(f"v_mov_b32 v{T+4+k}, s{sW32}")
        if hint and s == max(HS, min(genW, 31)): notice(T + 4, sHN); vq.add("hn")
        if s in (7, 15, 23): fs(f"wq{s}")
    wissue(99)
    stamp(2)
    if fakeXq:
        a("s_barrier")
        fake_hop("L_xq", WS_USED - 262144, F, F + 4)
    a(f"""
    v_cvt_pk_bf16_f32 v{T}, v{ACC}, v{ACC+1}
    v_cvt_pk_bf16_f32 v{T+1}, v{ACC+2}, v{ACC+3}
    ds_write_b64 v{vQPW}, {vr(T,2)}
    """)
    if hint and HS >= 32: notice(T + 4, sHN); vq.add("hn")
    vq.wait(("u", 7))
    for s in range(4):
        for u in range(2): a(f"ds_read_b128 {vr(UA+16*u+4*s,4)}, v{vUA+s} offset:{u*4096}")
    a("s_waitcnt lgkmcnt(8)\n s_barrier")
    fs("wB1")
    for s in range(4): a(f"ds_read_b128 {vr(QF+4*s,4)}, v{vQPR} offset:{s*64}")
    for s in range(4):
        a(f"s_waitcnt lgkmcnt({3-s})")
        for u in range(2): a(f"v_mfma_f32_16x16x32_bf16 {vr(D2+4*u,4)}, {vr(QF+4*s,4)}, {vr(UA+16*u+4*s,4)}, {vr(D2+4*u,4) if s else 0}")
    a(f"""
    v_pk_add_f32 {vr(D2,2)}, {vr(D2,2)}, {vr(D2+2,2)}
    v_pk_add_f32 {vr(D2+4,2)}, {vr(D2+4,2)}, {vr(D2+6,2)}
    v_add_f32 v{D2}, v{D2}, v{D2+1}
    v_add_f32 v{D2+4}, v{D2+4}, v{D2+5}
    v_cndmask_b32 v{D2}, v{D2}, v{D2+4}, vcc
    v_mul_f32 v{D2}, s{sSC}, v{D2}
    v_cvt_pk_bf16_f32 v{D2}, v{D2}, v{D2}
    ds_write_b16 v{vQOW}, v{D2}
    s_cmp_lg_u32 s{sW}, 0
    s_waitcnt lgkmcnt(0)
    s_barrier
    s_cbranch_scc1 L_W_nopub
    ds_read_b128 {vr(T,4)}, v{vQOR}
    s_mov_b32 exec_hi, 0
    s_waitcnt lgkmcnt(0)
    buffer_store_dwordx4 {vr(T,4)}, v{vQS}, {WS}, s{sQD} offen sc1
    v_add3_u32 v{T+4}, v{T}, v{T+1}, v{T+2}
    v_add_u32 v{T+4}, v{T+4}, v{T+3}
    """)
    for sh in (8, 4, 2, 1): a(f"v_add_u32_dpp v{T+4}, v{T+4}, v{T+4} row_ror:{sh} row_mask:0xf bank_mask:0xf")
    a(f"""
    s_mov_b32 exec_lo, 0x000f000f
    {"s_waitcnt vmcnt(0)" if ckdrain else ""}
    buffer_store_dwordx4 {vr(T+4,4)}, v{vCKW}, {WS}, s{sCK} offen sc1
    s_mov_b64 exec, -1
    L_W_nopub:
    """)
    stamp(3)
    if tlb:
        a(f"""
        s_mov_b32 s31, {OGS}
        v_mul_lo_u32 v{vt0}, v{vL}, s31
        v_lshlrev_b32 v{vt1}, 16, v{vL}
        v_min_u32 v{vt1}, {GLUB - 128}, v{vt1}
        s_cmp_eq_u32 s{sW}, 1
        s_cbranch_scc0 L_W_t2
        s_mov_b32 s3, {WS_OG + 32768}
        buffer_load_dword v{vPF}, v{vt0}, {WS}, s3 offen
        s_mov_b32 s3, {WS_OG + 32768 + 64*OGS}
        buffer_load_dword v{vPF}, v{vt0}, {WS}, s3 offen
        L_W_t2:
        s_cmp_eq_u32 s{sW}, 2
        s_cbranch_scc0 L_W_t3
        v_and_b32 v{vt0}, 31, v{vL}
        v_mul_u32_u24 v{vt0}, {FPS}, v{vt0}
        s_mov_b32 s3, {WS_FP + 32768}
        buffer_load_dword v{vPF}, v{vt0}, {WS}, s3 offen
        global_load_dword v{vPF}, v{vZ}, s[{pOUT}:{pOUT+1}]
        v_lshlrev_b32 v{vt0}, 16, v{vL}
        global_load_dword v{vPF}, v{vt0}, s[{pUV}:{pUV+1}]
        global_load_dword v{vPF}, v{vt0}, s[{pWO}:{pWO+1}]
        L_W_t3:
        s_cmp_eq_u32 s{sW}, 3
        s_cbranch_scc0 L_W_t4
        global_load_dword v{vPF}, v{vt1}, s[0:1]
        global_load_dword v{vPF}, v{vt1}, s[100:101]
        global_load_dword v{vPF}, v{vt1}, s[26:27]
        L_W_t4:
        """)
    if touch: a(f"""
    v_mul_u32_u24 v{vt0}, {TOUCH[1] - TOUCH[0]}, v{vL}
    s_mov_b32 s3, {TOUCH[0]}
    s_mov_b64 exec, 3
    buffer_load_dword v{vPF}, v{vt0}, {WS}, s3 offen
    global_load_dword v{vPF}, v{vZ}, s[{pOUT}:{pOUT+1}]
    s_mov_b64 exec, -1
    """)
    if pf3: code_pf("L_pf3", "L_pf3", "L_W_last")
    if cpre:
        a(f"""
        s_mov_b32 s36, s0
        s_mov_b32 s37, s1
        s_mov_b32 s38, 0x1000000
        s_lshl_b32 s3, s{sKB}, 17
        s_lshl_b32 s31, s{sW}, 15
        s_add_u32 s3, s3, s31
        s_add_u32 s3, s3, {(32 - cpre)*1024}
        s_lshl_b32 m0, s{sW}, 13
        s_mov_b32 s31, 0
        L_W_cp:
        buffer_load_dwordx4 v{vL16}, {R1}, s3 offen {cprepol} lds
        s_addk_i32 s3, 0x400
        s_add_u32 s31, s31, 1
        s_cmp_lt_u32 s31, {cpre}
        s_cbranch_scc1 L_W_cp
        """)
    srd(44, pUV, 0x400000); srd(48, pWO, 0x400000)
    ra = RA(T + 8, 256)
    vUV = ra(); vWO = ra(); vTU = ra(2, 2); vTW = ra(8, 4)
    SG = ra(4, 4); vSA = ra(); vOL = ra(); vTO = ra(4, 4); OP = ra(32, 4); OHC = ra(32, 4); WR = ra(4, 4); D1 = ra(4, 4); vBAD = ra(); e_ = ra(); t2 = ra(); M_ = ra()
    vCCW = ra(); vCCR = ra(); vCTW = ra(); vCTR = ra(4, 4); vFP = ra(); vM24 = ra(); vWBW = ra(); vWBR = ra(); vFA = ra(); vXO = ra(); vXV = ra(); vRDW = ra(); vRDR = ra()
    AF = ra(16, 4); D3 = ra(32, 4); EE = ra(16, 4)
    a(f"""
    v_and_b32 v{vt0}, 1, v{vG}
    v_lshlrev_b32 v{vt0}, 1, v{vt0}
    v_xor_b32 v{vt0}, v{vt0}, v{vN}
    s_lshl_b32 s31, s{sW}, 3
    s_and_b32 s31, s31, 8
    v_xor_b32 v{vt0}, s31, v{vt0}
    v_lshlrev_b32 v{vt0}, 4, v{vt0}
    v_lshl_or_b32 v{vUV}, v{vG}, 13, v{vt0}
    v_lshlrev_b32 v{vt0}, 2, v{vG}
    v_xor_b32 v{vt0}, v{vt0}, v{vN}
    v_lshlrev_b32 v{vt0}, 4, v{vt0}
    v_lshl_or_b32 v{vWO}, v{vG}, 10, v{vt0}
    s_lshl_b32 s31, s{sH}, 17
    s_lshl_b32 s3, s{sW}, 8
    s_add_u32 s31, s31, s3
    v_add_u32 v{vWO}, s31, v{vWO}
    s_lshl_b32 s{sWOo}, s{sJ}, 15
    s_mul_i32 s{sWOl}, s{sW}, 24576
    v_bfe_u32 v{vTW}, v{vL}, 2, 2
    v_and_b32 v{vTW+1}, 1, v{vG}
    v_lshlrev_b32 v{vt1}, 2, v{vTW}
    v_lshl_or_b32 v{vt1}, v{vTW+1}, 1, v{vt1}
    v_bfe_u32 v{vTW+1}, v{vL}, 1, 1
    v_xor_b32 v{vt1}, v{vt1}, v{vTW+1}
    v_and_b32 v{vTW+1}, 1, v{vL}
    v_lshlrev_b32 v{vTW+1}, 3, v{vTW+1}
    v_lshlrev_b32 v{vt0}, 4, v{vTW}
    v_add_u32 v{vt0}, v{vt0}, v{vG}
    v_lshl_or_b32 v{vt0}, v{vt0}, 8, v{vTW+1}
    v_add_u32 v{vt0}, {UK}, v{vt0}
    s_lshl_b32 s31, s{sW}, 2
    v_xor_b32 v{vTW+2}, s31, v{vt1}
    v_lshl_add_u32 v{vTU}, v{vTW+2}, 4, v{vt0}
    v_xor_b32 v{vTW+2}, 2, v{vTW+2}
    v_lshl_add_u32 v{vTU+1}, v{vTW+2}, 4, v{vt0}
    v_lshlrev_b32 v{vt0}, 11, v{vG}
    v_lshl_or_b32 v{vt0}, v{vTW}, 8, v{vt0}
    v_or_b32 v{vt0}, v{vt0}, v{vTW+1}
    v_add_u32 v{vt0}, s{sWOl}, v{vt0}
    v_lshlrev_b32 v{vt1}, 4, v{vt1}
    """)
    for u in range(8): a(f"v_xor_b32 v{vTW+u}, {u << 5}, v{vt1}\n v_add_u32 v{vTW+u}, v{vTW+u}, v{vt0}")
    a(f"""
    s_lshr_b32 s{sB}, s{sW}, 1
    s_lshl_b32 s31, s{sB}, 15
    s_lshl_b32 s3, s{sH}, 4
    s_add_u32 s31, s31, s3
    s_add_u32 s31, s31, {WS_ST}
    v_lshlrev_b32 v{vSA}, 9, v{vL}
    v_add_u32 v{vSA}, s31, v{vSA}
    s_lshl_b32 s{sPP}, s{sKB}, 9
    s_add_u32 s{sPP}, s{sPP}, s3
    s_add_u32 s{sPP}, s{sPP}, {WS_ST + 8}
    v_mul_u32_u24 v{vOL}, {2048 if omaj == 'c' else 8*OGS}, v{vG}
    v_lshl_add_u32 v{vOL}, v{vN}, 4, v{vOL}
    s_mul_i32 s{sOS}, s{sIDX}, {OGS if omaj == 'c' else 256}
    s_mul_i32 s31, s{sW}, {8192 if omaj == 'c' else 32*OGS}
    s_add_u32 s{sOS}, s{sOS}, s31
    s_add_u32 s{sOS}, s{sOS}, {WS_OG}
    """)
    lsb_tags(vTO, True)
    a(f"""
    s_lshl_b32 s31, s{sW}, 8
    s_add_u32 s31, s31, {WB}
    v_lshl_add_u32 v{vWBW}, v{vL}, 1, s31
    v_bfe_u32 v{vt0}, v{vL}, 3, 1
    v_lshlrev_b32 v{vt0}, 7, v{vt0}
    v_lshl_add_u32 v{vt0}, v{vG}, 4, v{vt0}
    s_and_b32 s3, s{sW}, 1
    s_lshl_b32 s3, s3, 6
    s_add_u32 s31, s31, s3
    v_add_u32 v{vWBR}, s31, v{vt0}
    v_lshrrev_b32 v{vt0}, 5, v{vL}
    v_lshlrev_b32 v{vt0}, 1, v{vt0}
    s_lshl_b32 s31, s{sB}, 2
    s_and_b32 s3, s{sW}, 1
    s_add_u32 s31, s31, s3
    v_add_u32 v{vt0}, s31, v{vt0}
    v_mul_u32_u24 v{vt0}, 272, v{vt0}
    v_lshl_add_u32 v{vt0}, v{vN}, 4, v{vt0}
    v_and_b32 v{vt1}, 1, v{vG}
    v_lshl_add_u32 v{vt0}, v{vt1}, 3, v{vt0}
    v_add_u32 v{vCCW}, {CC}, v{vt0}
    v_lshrrev_b32 v{vt0}, 3, v{vN}
    v_lshlrev_b32 v{vt0}, 2, v{vt0}
    v_and_or_b32 v{vt0}, v{vN}, 3, v{vt0}
    v_mul_u32_u24 v{vt0}, 272, v{vt0}
    v_lshl_add_u32 v{vt0}, v{vG}, 4, v{vt0}
    v_add_u32 v{vCCR}, {CC}, v{vt0}
    v_lshrrev_b32 v{vt0}, 5, v{vL}
    v_mul_u32_u24 v{vt0}, 272, v{vt0}
    v_lshl_add_u32 v{vt0}, v{vt1}, 5, v{vt0}
    s_lshl_b32 s31, s{sW}, 6
    s_add_u32 s31, s31, {CT}
    v_add_u32 v{vCTW}, s31, v{vt0}
    """)
    if not sm:
        a(f"""
        v_lshl_add_u32 v{vCTW}, v{vN}, 1, v{vCTW}
        v_and_b32 v{vt0}, 1, v{vL}
        v_mul_u32_u24 v{vt0}, 272, v{vt0}
        v_lshl_add_u32 v{vt0}, v{vG}, 4, v{vt0}
        """)
        for TT in range(4):
            a(f"s_add_u32 s3, s{sJ}, {TT}\n s_and_b32 s3, s3, 3\n s_lshl_b32 s3, s3, 6\n s_add_u32 s3, s3, {CT}\n v_add_u32 v{vCTR+TT}, s3, v{vt0}")
    else:
        a(f"""
        v_bfe_u32 v{vt1}, v{vN}, 1, 1
        v_lshl_add_u32 v{vCTW}, v{vt1}, 4, v{vCTW}
        v_lshrrev_b32 v{vt0}, 2, v{vN}
        v_lshl_add_u32 v{vCTW}, v{vt0}, 2, v{vCTW}
        v_and_b32 v{vt0}, 1, v{vL}
        v_lshl_add_u32 v{vCTW}, v{vt0}, 1, v{vCTW}
        v_mul_u32_u24 v{vt0}, 272, v{vt0}
        v_lshl_add_u32 v{vt0}, v{vt1}, 4, v{vt0}
        v_mul_u32_u24 v{vCTR+2}, 0xaaaa, v{vt1}
        v_add_u32 v{vCTR+2}, 0x4444, v{vCTR+2}
        v_and_b32 v{vt1}, 1, v{vG}
        v_lshl_add_u32 v{vt0}, v{vt1}, 5, v{vt0}
        v_add_u32 v{vt0}, {CT}, v{vt0}
        v_lshrrev_b32 v{vt1}, 1, v{vG}
        v_add_u32 v{vt1}, s{sJ}, v{vt1}
        v_and_b32 v{vCTR}, 3, v{vt1}
        v_xor_b32 v{vCTR+1}, 2, v{vCTR}
        v_lshl_add_u32 v{vCTR}, v{vCTR}, 6, v{vt0}
        v_lshl_add_u32 v{vCTR+1}, v{vCTR+1}, 6, v{vt0}
        """)
        for k in range(32 if sm == 1 else 8): a(f"v_mov_b32 v{D3+k}, 0")
        if sm == 2:
            vK = D3 + 8
            a(f"v_mov_b32 v{vt0}, {CT + 544}\n ds_write_b128 v{vt0}, {vr(D3,4)}\n v_lshrrev_b32 v{vt1}, 2, v{vN}")
            for k in range(4):
                a(f"v_cmp_eq_u32 vcc, {k}, v{vt1}")
                for pr in range(2): a(f"v_cndmask_b32 v{vK+2*k+pr}, v{vt0}, v{vCTR+pr}, vcc")
    fp_addr(vFP, vM24)
    if sm == 2: a(f"v_mul_u32_u24 v{vt0}, {2*FPS}, v{vG}\n v_add_u32 v{vFP}, v{vFP}, v{vt0}")
    a(f"""
    s_mul_i32 s{sFPd}, s{sW}, {8*FPS}
    s_lshl_b32 s31, s{sIDX}, 7
    s_add_u32 s{sFPd}, s{sFPd}, s31
    s_add_u32 s{sFPd}, s{sFPd}, {WS_FP}
    v_lshrrev_b32 v{vFA}, 1, v0
    v_lshlrev_b32 v{vFA}, 7, v{vFA}
    v_and_b32 v{vt0}, 1, v0
    v_lshl_add_u32 v{vFA}, v{vt0}, 4, v{vFA}
    s_mul_i32 s{sF1}, s{sH}, {FPS}
    s_lshl_b32 s31, s{sJ}, 5
    s_add_u32 s{sF1}, s{sF1}, s31
    s_add_u32 s{sF1}, s{sF1}, {WS_FP}
    s_add_u32 s{sF2}, s{sF1}, {128*128}
    s_lshr_b32 s31, s{sH}, 1
    s_lshl_b32 s31, s31, 5
    s_and_b32 s3, s{sH}, 1
    s_lshl_b32 s3, s3, 3
    s_add_u32 s31, s31, s3
    s_lshl_b32 s3, s{sJ}, 1
    s_add_u32 s31, s31, s3
    s_lshl_b32 s31, s31, 1
    v_and_b32 v{vXO}, 1, v{vL}
    v_lshlrev_b32 v{vXO}, 10, v{vXO}
    v_bfe_u32 v{vt0}, v{vL}, 1, 1
    v_lshl_add_u32 v{vXO}, v{vt0}, 5, v{vXO}
    v_add_u32 v{vXO}, s31, v{vXO}
    global_load_dword v{vXV}, v{vXO}, s[{pX}:{pX+1}]
    {f"global_load_dword v{vPF}, v{vXO}, s[{pOUT}:{pOUT+1}]" if otouch else ""}
    v_cmp_gt_u32 vcc, 224, v0
    s_mov_b64 s[{sMK}:{sMK+1}], vcc
    v_and_b32 v{vt0}, 1, v{vG}
    v_lshlrev_b32 v{vt0}, 7, v{vt0}
    v_lshrrev_b32 v{vt1}, 5, v{vL}
    v_lshl_add_u32 v{vt0}, v{vt1}, 6, v{vt0}
    v_and_b32 v{vt1}, 1, v{vL}
    v_lshl_add_u32 v{vt0}, v{vt1}, 4, v{vt0}
    s_lshl_b32 s31, s{sW}, 2
    s_add_u32 s31, s31, {RD}
    v_add_u32 v{vRDW}, s31, v{vt0}
    v_and_b32 v{vt0}, 3, v{vL}
    v_lshlrev_b32 v{vt0}, 5, v{vt0}
    v_add_u32 v{vRDR}, {RD}, v{vt0}
    s_and_b32 s{sGO}, s{sIDX}, 0xfc
    s_lshl_b32 s{sGO}, s{sGO}, 7
    s_add_u32 s{sGO}, s{sGO}, {WS_GO}
    s_mov_b32 s{sSPIN}, 0
    """)
    if pwF:
        assert sm == 2
        a(f"buffer_store_dwordx4 {vr(D3,4)}, v{vFP}, {WS}, s{sFPd} offen sc1")
    if wck:
        a(f"v_and_b32 v{e_}, 31, v{vL}\n v_lshlrev_b32 v{e_}, 9, v{e_}\n s_lshl_b32 s{sHN}, s{sW}, 7\n s_add_u32 s{sHN}, s{sHN}, {WS_CK + 4}")
        if wck == 'first': poll("L_W_ck", f"v{vt0}", e_, f"s{sHN}", vt0, "L_W_ckd")
    if goat and onewave:
        a(f"s_cmp_lg_u32 s{sW}, 0\n s_cbranch_scc1 L_W_went")
        poll("L_W_go", f"v{vt0}", vZ, f"s{sGO}", vt0, "L_W_went", nap=slg)
        a("s_barrier")
    elif goat: poll("L_W_go", f"v{vt0}", vZ, f"s{sGO}", vt0, "L_W_went", nap=slg)
    if wck == 'last': poll("L_W_ck", f"v{vt0}", e_, f"s{sHN}", vt0, "L_W_ckd")
    if genearly: a(f"s_or_b32 s31, s{sIDX}, s{sW}\n s_cmp_eq_u32 s31, 0\n s_cselect_b32 s{sGO}, 0, {WS_USED}\n v_add_u32 v{vGen}, 1, v{vGen}")
    fs("wGo")
    vq.q = []
    def uv_load(i):
        t = vt0 if i % 2 == 0 else vt1
        a(f"v_xor_b32 v{t}, {(i>>2) << 6}, v{vUV}\n s_add_u32 m0, s{sUL}, {i*1024}\n s_add_u32 s3, s{sROW}, {i*4*8192}\n buffer_load_dwordx4 v{t}, {R3}, s3 offen {uvpol} lds"); vq.add(("v", i))
    def wo_load(ii):
        if fakeXo and ii >= 8: return
        t = vt0 if ii % 2 == 0 else vt1
        if ii % 8 == 0 and ii: a(f"s_add_u32 s{sWOo}, s{sWOo}, 0x8000\n s_and_b32 s{sWOo}, s{sWOo}, 0x1ffff")
        a(f"v_xor_b32 v{t}, {((ii>>1)&1) << 5}, v{vWO}\n s_add_u32 m0, s{sWOl}, {WO + (ii % 24)*1024}\n s_add_u32 s3, s{sWOo}, {(ii&7)*4096}\n buffer_load_dwordx4 v{t}, {R4}, s3 offen {woown if ii < 8 else wopol} lds"); vq.add(("o", ii))
    def wo_tr(TT):
        if fakeXo and TT: return
        for u in range(8):
            for jh in range(2): a(f"ds_read_b64_tr_b16 {ar(((u*4+TT) if sm else (TT*8+u))*4+2*jh,2)}, v{vTW+u} offset:{WO + ((TT*8) % 24 + jh)*1024}")
            if u in (3, 7): a("s_waitcnt lgkmcnt(6)")
    def uv_tr():
        vq.wait(("v", 7))
        a("s_barrier")
        for u in range(2):
            for Tk in range(4):
                for jh in range(2): a(f"ds_read_b64_tr_b16 {ar(128+(u*4+Tk)*4+2*jh,2)}, v{vTU+u} offset:{jh*16384 + Tk*1024}")
            a("s_waitcnt lgkmcnt(6)")
    for ii in range(8):
        if WI and ii == WI: a(f"s_waitcnt vmcnt({WJ})")
        wo_load(ii)
    if sorder == 'a':
        for i in range(8): uv_load(i)
        for ii in range(8, 16): wo_load(ii)
        fs("wI1")
        vq.wait(("o", 7)); wo_tr(0)
        for ii in range(16, 24): wo_load(ii)
        uv_tr()
        for ii in range(24, 32): wo_load(ii)
    else:
        for i in range(4): uv_load(i)
        for ii in range(8, 24):
            wo_load(ii)
            if ii % 4 == 3: uv_load(4 + (ii - 8) // 4)
        fs("wI1")
        vq.wait(("o", 7)); wo_tr(0); a("s_waitcnt lgkmcnt(0)")
        for ii in range(24, 32): wo_load(ii)
    if late: code_pf("L_pf2", "L_W_staged", "L_W_last"); vq.add("pf")
    fs("wI3")
    if not stail:
        vq.wait(("o", 15)); wo_tr(1)
        vq.wait(("o", 23)); wo_tr(2)
        if sorder != 'a': uv_tr()
        vq.wait(("o", 31)); wo_tr(3)
        a(f"L_W_staged:\n s_mov_b32 s{sSPIN}, 0")
        stamp(4)
        if prepoll: poll("L_W_pre", f"v{vt0}", vZ, f"s{sPP}", vt0, "L_W_pred", mult=4)
    else:
        a(f"buffer_load_dword v{vt0}, v{vZ}, {WS}, s{sPP} offen sc1"); vq.add("pp")
        vq.wait(("o", 15)); wo_tr(1)
        if stail == 1: vq.wait(("o", 23)); wo_tr(2)
        a(f"L_W_staged:\n s_mov_b32 s{sSPIN}, 0\n s_waitcnt vmcnt(0)")
        stamp(4)
        a(f"""
        v_cmp_ne_u32 vcc, s{sW32}, v{vt0}
        s_cbranch_vccz L_W_seen
        buffer_load_dword v{vt0}, v{vZ}, {WS}, s{sPP} offen sc1
        """)
        keep = capture(lambda: [wo_tr(T_) for T_ in ((3,) if stail == 1 else (2, 3))])
        a.lines += keep
        a(f"s_waitcnt vmcnt(0)\n v_cmp_ne_u32 vcc, s{sW32}, v{vt0}\n s_cbranch_vccz L_W_poll")
        poll("L_W_pre", f"v{vt0}", vZ, f"s{sPP}", vt0, "L_W_pred", mult=4, nap=slp)
        a(f"s_branch L_W_poll\n L_W_seen:\n buffer_load_dwordx4 {vr(SG,4)}, v{vSA}, {WS}, 0 offen sc1")
        a.lines += keep
        a(f"s_waitcnt vmcnt(0)\n v_cmp_ne_u32 vcc, s{sW32}, v{SG+2}\n s_cbranch_vccz L_W_got")
    def o_loads():
        for s in range(8): a(f"s_add_u32 s3, s{sOS}, {s*(256 if omaj == 'c' else OGS)}\n buffer_load_dwordx4 {vr(OP+4*s,4)}, v{vOL}, {WS}, s3 offen sc1")
    poll("L_W_poll", vr(SG,4), vSA, "0", SG + 2, "L_W_got", width="dwordx4", mult=4)
    a(f"s_mov_b32 s{sSPIN}, 0")
    stamp(5)
    if oat == 0: o_loads()
    a(f"v_mov_b32 v{M_}, v{SG}")
    red("v_max_f32", M_, t2)
    a(f"v_sub_f32 v{e_}, v{SG}, v{M_}\n v_exp_f32 v{e_}, v{e_}\n v_mul_f32 v{SG+1}, v{e_}, v{SG+1}")
    if not lateL:
        red("v_add_f32", SG+1, t2)
        a(f"v_rcp_f32 v{SG+1}, v{SG+1}\n s_nop 0\n v_mul_f32 v{e_}, v{e_}, v{SG+1}")
    if oat == 1: o_loads()
    a(f"""
    v_cvt_pk_bf16_f32 v{t2}, v{e_}, v{e_}
    v_and_b32 v{M_}, 0xffff0000, v{t2}
    v_sub_f32 v{e_}, v{e_}, v{M_}
    v_cvt_pk_bf16_f32 v{e_}, v{e_}, v{e_}
    ds_write_b16 v{vWBW}, v{t2}
    ds_write_b16 v{vWBW}, v{e_} offset:128
    s_waitcnt lgkmcnt(0)
    ds_read_b128 {vr(WR,4)}, v{vWBR}
    s_waitcnt lgkmcnt(0)
    """)
    for s in range(8): onehot(OHC + 4*s, WR + (s >> 1), s & 1, MU)
    if oat == 2: o_loads()
    if lateL:
        red("v_add_f32", SG+1, t2)
        a(f"v_rcp_f32 v{SG}, v{SG+1}\n s_nop 0\n v_mov_b32 v{SG+1}, v{SG}")
    fs("wOH")
    a(f"L_W_comb:\n v_mov_b32 v{vBAD}, -1")
    for s in range(8):
        a(f"s_waitcnt vmcnt({7-s})")
        for k in range(4): a(f"v_xor_b32 v{OP+4*s+k}, v{OP+4*s+k}, v{vTO+k}")
        for k in (0, 2): a(f"v_bitop3_b32 v{vBAD}, v{vBAD}, v{OP+4*s+k}, v{OP+4*s+k+1} bitop3:0x80")
        a(f"v_mfma_f32_16x16x32_bf16 {vr(D1,4)}, {vr(OHC+4*s,4)}, {vr(OP+4*s,4)}, {vr(D1,4) if s else 0}")
    a(f"""
    v_and_b32 v{vBAD}, 0x10001, v{vBAD}
    v_cmp_ne_u32 vcc, 0x10001, v{vBAD}
    s_add_u32 s{sSPIN}, s{sSPIN}, 1
    s_cbranch_vccnz L_W_oagain
    L_W_cok:
    """)
    stamp(6)
    a(f"""
    v_and_b32 v{vt1}, 1, v{vG}
    v_cmp_eq_u32 vcc, 1, v{vt1}
    {f"v_pk_mul_f32 {vr(D1,2)}, {vr(D1,2)}, {vr(SG,2)}" if lateL else ""}
    {f"v_pk_mul_f32 {vr(D1+2,2)}, {vr(D1+2,2)}, {vr(SG,2)}" if lateL else ""}
    v_cvt_pk_bf16_f32 v{WR}, v{D1}, v{D1+1}
    v_cvt_pk_bf16_f32 v{WR+1}, v{D1+2}, v{D1+3}
    ds_write_b64 v{vCCW}, {vr(WR,2)}
    s_waitcnt lgkmcnt(0)
    s_barrier
    """)
    fs("wCC")
    for Tk in range(4): a(f"ds_read_b128 {vr(AF+4*Tk,4)}, v{vCCR} offset:{Tk*64}")
    if genearly: a(f"s_mov_b64 exec, 1\n buffer_store_dword v{vGen}, v{vZ}, {WS}, s{sGO} offen sc1\n s_mov_b64 exec, -1")
    DU = EE if sm else D3
    for Tk in range(4):
        a(f"s_waitcnt lgkmcnt({3-Tk})")
        for u in range(2): a(f"v_mfma_f32_16x16x32_bf16 {vr(DU+4*u,4)}, {vr(AF+4*Tk,4)}, {ar(128+(u*4+Tk)*4,4)}, {vr(DU+4*u,4) if Tk else 0}")
    a(f"""
    v_pk_add_f32 {vr(DU,2)}, {vr(DU,2)}, {vr(DU+2,2)}
    v_pk_add_f32 {vr(DU+4,2)}, {vr(DU+4,2)}, {vr(DU+6,2)}
    v_add_f32 v{DU}, v{DU}, v{DU+1}
    v_add_f32 v{DU+4}, v{DU+4}, v{DU+5}
    v_cndmask_b32 v{vt0}, v{DU}, v{DU+4}, vcc
    v_cvt_pk_bf16_f32 v{vt0}, v{vt0}, v{vt0}
    ds_write_b16 v{vCTW}, v{vt0}
    s_waitcnt lgkmcnt(0)
    s_barrier
    """)
    if fakeXo:
        fake_hop("L_xo", WS_USED - 131072, AF, AF + 4)
        a("s_barrier")
    fs("wCT")
    pend = []
    if not sm:
        for TT in range(4): a(f"ds_read_b128 {vr(AF+4*TT,4)}, v{vCTR+TT}")
        for k in range(4):
            n = 0
            for TT in range(4):
                if k == 0: a(f"s_waitcnt lgkmcnt({3-TT})")
                for u in (2*k, 2*k+1):
                    a(f"v_mfma_f32_16x16x32_bf16 {vr(D3+4*u,4)}, {vr(AF+4*TT,4)}, {ar((TT*8+u)*4,4)}, {vr(D3+4*u,4) if TT else 0}")
                    n += 1
                    if pend and n >= 4: a(pend.pop(0))
            while pend: a(pend.pop(0))
            pend = fp_ops(k, D3, EE, vFP, vM24, sFPd)
    elif sm == 2:
        A2 = OHC
        for k in range(8): a(f"ds_read_b128 {vr(A2+4*k,4)}, v{vK+k}")
        for k in range(1 if fakeXo else 4):
            for pr in range(2):
                a(f"s_waitcnt lgkmcnt({7 - 2*k - pr})")
                for u in (2*k, 2*k+1):
                    a(f"v_smfmac_f32_16x16x64_bf16 {vr(D3+4*(u&1),4)}, {vr(A2+4*(2*k+pr),4)}, {ar(u*16+8*pr,8)}, v{vCTR+2}")
        for u in range(2): a(f"v_pk_add_f32 {vr(D3+4*u,2)}, {vr(D3+4*u,2)}, {vr(D3+4*u+2,2)}")
        for d in range(4): a(f"v_and_or_b32 v{EE+d}, v{D3+4*(d>>1)+(d&1)}, v{vM24}, s{sTAU+d}")
        a(f"buffer_store_dwordx4 {vr(EE,4)}, v{vFP}, {WS}, s{sFPd} offen sc1")
    else:
        for pr in range(2): a(f"ds_read_b128 {vr(AF+4*pr,4)}, v{vCTR+pr}")
        done = []
        for k in range(4):
            for pr in range(2):
                if k == 0: a(f"s_waitcnt lgkmcnt({1-pr})")
                for u in (2*k, 2*k+1):
                    a(f"v_smfmac_f32_16x16x64_bf16 {vr(D3+4*u,4)}, {vr(AF+4*pr,4)}, {ar(u*16+8*pr,8)}, v{vCTR+2}")
                    for _ in range(2):
                        if pend: a(pend.pop(0))
            if k >= 1:
                kk = k - 1
                pend += [f"v_pk_add_f32 {vr(D3+4*u,2)}, {vr(D3+4*u,2)}, {vr(D3+4*u+2,2)}" for u in (2*kk, 2*kk+1)] + fp_ops(kk, D3, EE, vFP, vM24, sFPd)
        pend += [f"v_pk_add_f32 {vr(D3+4*u,2)}, {vr(D3+4*u,2)}, {vr(D3+4*u+2,2)}" for u in (6, 7)] + fp_ops(3, D3, EE, vFP, vM24, sFPd)
    while pend: a(pend.pop(0))
    stamp(7)
    G0 = OP; G1 = OP + 4
    def g1_load():
        for k in range(4): a(f"v_mov_b32 v{G1+k}, s{sTAU+k}")
        if fmask: a(f"s_and_saveexec_b64 s[100:101], s[{sMK}:{sMK+1}]\n buffer_load_dwordx4 {vr(G1,4)}, v{vFA}, {WS}, s{sF2} offen sc1\n s_mov_b64 exec, s[100:101]")
        else: a(f"s_mov_b64 exec, s[{sMK}:{sMK+1}]\n buffer_load_dwordx4 {vr(G1,4)}, v{vFA}, {WS}, s{sF2} offen sc1\n s_mov_b64 exec, -1")
    a(f"s_mov_b32 s{sSPIN}, 0")
    if gearly: g1_load()
    a(f"""
    s_waitcnt vmcnt({int(gearly) + FV})
    {"s_barrier" if fbar else ""}
    {(f"global_load_dword v{vXV}, v{vXO}, s[{pX}:{pX+1}] sc1" + chr(10) + "s_waitcnt vmcnt(0)" + chr(10)) * xlate}
    L_W_fin:
    buffer_load_dwordx4 {vr(G0,4)}, v{vFA}, {WS}, s{sF1} offen sc1
    """)
    if not gearly: g1_load()
    a(f"""
    v_mov_b32 v{vBAD}, 0
    s_add_u32 s{sSPIN}, s{sSPIN}, 1
    s_waitcnt vmcnt({0 if fmask else 1})
    """)
    order = (4, 5, 6, 7, 0, 1, 2, 3) if gearly else range(8)
    if not fin2:
        for n, k in enumerate(order):
            if n == 4: a("s_waitcnt vmcnt(0)")
            a(f"v_bitop3_b32 v{vBAD}, v{vBAD}, v{G0+k}, s{sTAU+(k&3)} bitop3:0xf6")
        a(f"v_and_b32 v{vBAD}, 0xff, v{vBAD}")
    else:
        for n, k in enumerate(order):
            if n == 4: a(f"v_or3_b32 v{vBAD}, v{G0+order[0]}, v{G0+order[1]}, v{G0+order[2]}\n s_waitcnt vmcnt(0)")
            a(f"v_xor_b32 v{G0+k}, s{sTAU+(k&3)}, v{G0+k}")
        a(f"v_or3_b32 v{vt0}, v{G0+order[3]}, v{G0+order[4]}, v{G0+order[5]}\n v_or3_b32 v{vBAD}, v{vBAD}, v{G0+order[6]}, v{G0+order[7]}\n v_bitop3_b32 v{vBAD}, v{vBAD}, v{vt0}, v{vM24} bitop3:0x54")
    a(f"""
    v_cmp_ne_u32 vcc, 0, v{vBAD}
    s_cbranch_vccnz L_W_fagain
    L_W_fok:
    {"s_mov_b64 exec, -1" if fmask else ""}
    """)
    stamp(8)
    if not fin2:
        for k in range(8): a(f"v_and_b32 v{G0+k}, v{vM24}, v{G0+k}")
    for k in range(4): a(f"v_permlane16_swap_b32 v{G0+k}, v{G1+k}")
    for k in range(4): a(f"v_add_f32 v{G0+k}, v{G0+k}, v{G1+k}")
    for k in range(2): a(f"v_permlane32_swap_b32 v{G0+k}, v{G0+2+k}")
    for k in range(2): a(f"v_add_f32 v{G0+k}, v{G0+k}, v{G0+2+k}")
    for sh in (8, 4, 2):
        for k in range(2): a(f"v_add_f32_dpp v{G0+k}, v{G0+k}, v{G0+k} row_ror:{sh} row_mask:0xf bank_mask:0xf")
    a(f"""
    s_mov_b32 exec_lo, 0x00030003
    s_mov_b32 exec_hi, 0x00030003
    ds_write2_b32 v{vRDW}, v{G0}, v{G0+1} offset0:0 offset1:8
    s_mov_b64 exec, -1
    s_cmp_lg_u32 s{sW}, 0
    s_waitcnt lgkmcnt(0)
    s_barrier
    s_cbranch_scc1 L_W_last
    ds_read_b128 {vr(OHC,4)}, v{vRDR}
    ds_read_b128 {vr(OHC+4,4)}, v{vRDR} offset:16
    ds_read_b128 {vr(OHC+8,4)}, v{vRDR} offset:128
    ds_read_b128 {vr(OHC+12,4)}, v{vRDR} offset:144
    v_lshlrev_b32 v{G0}, 16, v{vXV}
    v_and_b32 v{G0+1}, 0xffff0000, v{vXV}
    s_mov_b64 exec, 15
    """)
    for k in range(4):
        a(f"s_waitcnt lgkmcnt({3-k})\n v_pk_add_f32 {vr(OHC+4*k,2)}, {vr(OHC+4*k,2)}, {vr(OHC+4*k+2,2)}\n v_add_f32 v{OHC+4*k}, v{OHC+4*k}, v{OHC+4*k+1}")
    a(f"""
    v_cvt_pk_bf16_f32 v{G1}, v{OHC}, v{OHC+4}
    v_cvt_pk_bf16_f32 v{G1+1}, v{OHC+8}, v{OHC+12}
    v_lshlrev_b32 v{G0+2}, 16, v{G1}
    v_and_b32 v{G0+3}, 0xffff0000, v{G1}
    v_pk_add_f32 {vr(G0,2)}, {vr(G0,2)}, {vr(G0+2,2)}
    v_lshlrev_b32 v{G0+2}, 16, v{G1+1}
    v_cvt_pk_bf16_f32 v{G1}, v{G0}, v{G0+1}
    v_and_b32 v{G0+3}, 0xffff0000, v{G1+1}
    v_lshlrev_b32 v{G0}, 16, v{G1}
    v_and_b32 v{G0+1}, 0xffff0000, v{G1}
    v_pk_add_f32 {vr(G0,2)}, {vr(G0,2)}, {vr(G0+2,2)}
    v_cvt_pk_bf16_f32 v{G1}, v{G0}, v{G0+1}
    global_store_dword v{vXO}, v{G1}, s[{pOUT}:{pOUT+1}] {outpol}
    """)
    if not genearly: a(f"""
    s_cmp_lg_u32 s{sIDX}, 0
    s_cbranch_scc1 L_W_last
    s_mov_b64 exec, 1
    s_add_u32 s31, s{sGEN}, 1
    v_mov_b32 v{G0}, s31
    buffer_store_dword v{G0}, v{vZ}, {WS}, 0 offen sc1
    """)
    a("L_W_last:")
    a("s_branch L_fin" if diag else "L_exit:\n s_endpgm")
    a("L_W_oagain:")
    a(f"s_cmp_lt_u32 s{sSPIN}, {SPIN}\n s_cbranch_scc0 L_W_cok")
    o_loads()
    a("s_branch L_W_comb")
    a(f"L_W_fagain:\n s_cmp_lt_u32 s{sSPIN}, {SPIN*4}\n s_cbranch_scc0 L_W_fok")
    if fmask: a("s_mov_b64 exec, vcc")
    if gearly: g1_load()
    a("s_branch L_W_fin")
    a.lines = pro + a.lines + partA
    a("L_fin:")
    if nodump or not diag: pass
    elif dbg:
        a("s_mov_b64 exec, -1")
        stamp(9)
        a(f"""
        s_waitcnt lgkmcnt(0)
        s_cmp_lg_u32 s{sW}, 0
        s_cbranch_scc1 L_end
        s_and_b32 s31, s2, 0xf7
        s_cmp_lg_u32 s31, 0
        s_cbranch_scc1 L_end
        s_lshl_b32 s31, s2, 2
        v_mov_b32 v5, s31
        """)
        for k, j in enumerate((1, 2, 3, 4, 5, 6, 7, 9)): a(f"s_sub_u32 s31, s{64+2*j}, s64\n v_mov_b32 v6, s31\n global_store_dword v5, v6, s[26:27] offset:{4*k}")
    else:
        a("s_mov_b64 exec, -1")
        stamp(9)
        a(f"""
        s_waitcnt lgkmcnt(0)
        s_cmp_lg_u32 s{sW}, 0
        s_cbranch_scc1 L_end
        s_lshl_b32 s31, s2, 8
        s_add_u32 s31, s31, {STAMP}
        s_add_u32 s28, s28, s31
        s_addc_u32 s29, s29, 0
        v_mov_b32 v5, 0
        """)
        for j in range(12 if fine else 10): a(f"v_mov_b32 v6, s{64+2*j}\n v_mov_b32 v7, s{65+2*j}\n global_store_dwordx2 v5, v[6:7], s[28:29] offset:{8*j}\n s_nop 1")
    if diag: a("L_exit:")
    a("L_end:\n s_endpgm")
    a.end_kernel(kn, vgpr=512, accum=256)
    a.lines, added = hazard.fix(a.lines)
    return a.text(DOC)

DOC = """; ---------------------------------------------------------------------------------------------------
; Role W (id bit 3 set; head h, quarter j): q, q_abs piece -> workspace; later combines the 128 partial
; ---------------------------------------------------------------------------------------------------
"""
FA = ["c3", "aS0", "aS31", "c4", "aB2", "aP1", "aP2", "c6", "aGU", "aGd", "aGk", "c7"]
FA2 = ["c0", "aK", "c1", "aLN", "aSet", "c2", "aHn", "aC", "aQ", "c3", "c6", "c7"]
FW = ["c0", "wK", "c1", "wX", "wLN", "wq7", "wq15", "wq23", "c2", "wB1", "c3", "wGo"]
FW2 = ["wGo", "wI1", "wI3", "c4", "c5", "wOH", "c6", "wCC", "wCT", "c7", "c8", "c9"]
names_A = ["start", "first", "issued", "landed", "S done", "P done", "O stored", "glu done", "-", "end"]
names_W = ["start", "issued", "q done", "qabs pub", "staged", "stats", "O ok", "FP pub", "FP ok", "end"]
if __name__ == "__main__":
    open("k11.s", "w").write(gen())
    open("k11d.s", "w").write(gen(diag=True))
```
